```python
import torch

def _softmax(x, axis=-1):
    return torch.softmax(x, dim=axis)
def _gelu(x):
    return torch.nn.functional.gelu(x, approximate="tanh")
def _silu(x):
    return torch.nn.functional.silu(x)
def _sigmoid(x):
    return torch.sigmoid(x)
def _layernorm(x, axis=-1, eps=1e-5):
    m = x.mean(dim=axis, keepdim=True)
    v = x.var(dim=axis, keepdim=True, unbiased=False)
    return (x - m) / torch.sqrt(v + eps)
def _scatter_add(tgt, idx, src, axis=0):
    return tgt.clone().index_add_(axis, idx, src)
def _segment_sum(src, seg, n):
    out = torch.zeros((n,) + src.shape[1:], dtype=src.dtype)
    return out.index_add_(0, seg, src)
def _pad(x, pw):
    flat = tuple(v for pair in reversed(pw) for v in pair)
    return torch.nn.functional.pad(x, flat)

kernel_name = 'recurrent_scan__mha_block_cached__glu_gated_glu__prompt'

def setup_inputs():

    _w = (lambda a: (lambda t: t.to(torch.bfloat16) if t.is_floating_point() else t)(torch.as_tensor(a)))
    def _A_setup():
        B, Sq, D = 1, 2048, 576
        H, Sk, Dh = 32, 2048, 128
        return {
            "x": _w((lambda *s: torch.randn(*s, dtype=torch.bfloat16) * 0.05)(B, Sq, D)),
            "k_cache": _w((lambda *s: torch.randn(*s, dtype=torch.bfloat16) * 0.8)(B, H, Sk, Dh)),
            "v_cache": _w((lambda *s: torch.randn(*s, dtype=torch.bfloat16) * 0.2)(B, H, Sk, Dh)),
            "wq": _w((lambda *s: torch.randn(*s, dtype=torch.bfloat16) * 0.8)(D, H * Dh) * (D ** -0.5)),
            "wo": _w((lambda *s: torch.randn(*s, dtype=torch.bfloat16) * 0.2)(H * Dh, D) * ((H * Dh) ** -0.5)),
        }
    _A_in = _A_setup()

    def _B_setup():
        B, S, D, F = 1, 2048, 576, 4608
        return {
            "x": _w((lambda *s: torch.randn(*s, dtype=torch.bfloat16) * 0.05)(B, S, D)),
            "w_gate": _w((lambda *s: torch.randn(*s, dtype=torch.bfloat16) * 0.2)(D, F)),
            "w_up": _w((lambda *s: torch.randn(*s, dtype=torch.bfloat16) * 0.1)(D, F)),
            "w_down": _w((lambda *s: torch.randn(*s, dtype=torch.bfloat16) * 0.1)(F, D)),
        }
    _B_in = _B_setup()

    return {
        "A_x": _A_in["x"],
        "A_k_cache": _A_in["k_cache"],
        "A_v_cache": _A_in["v_cache"],
        "A_wq": _A_in["wq"],
        "A_wo": _A_in["wo"],
        "B_x": _B_in["x"],
        "B_w_gate": _B_in["w_gate"],
        "B_w_up": _B_in["w_up"],
        "B_w_down": _B_in["w_down"],
    }

def reference(A_x, A_k_cache, A_v_cache, A_wq, A_wo, B_x, B_w_gate, B_w_up, B_w_down):
    def _A_ref(x, k_cache, v_cache, wq, wo):
        B, Sq, D = x.shape
        H, Dh = 32, 128
        q = (lambda x, *d: x.permute(*d))((x @ wq).reshape(B, Sq, H, Dh), 0, 2, 1, 3)
        scores = torch.einsum("bhqd,bhkd->bhqk", q, k_cache) * (Dh ** -0.5)
        p = _softmax(scores, axis=-1)
        o = torch.einsum("bhqk,bhkd->bhqd", p, v_cache)
        return (lambda x, *d: x.permute(*d))(o, 0, 2, 1, 3).reshape(B, Sq, H * Dh) @ wo

    def _B_ref(x, w_gate, w_up, w_down):
        g = torch.einsum("bsd,df->bsf", x, w_gate)
        u = torch.einsum("bsd,df->bsf", x, w_up)
        h = _sigmoid(g) * u
        return torch.einsum("bsf,fd->bsd", h, w_down)

    x = A_x
    xn = _layernorm(x, axis=-1)
    s = _A_ref(xn, A_k_cache, A_v_cache, A_wq, A_wo)
    g = _silu(_B_ref(xn, B_w_gate, B_w_up, B_w_down))
    return x + s * g
```

```python
NAME = "recurrent_scan__mha_block_cached__glu_gated_glu__prompt"
S, D, H, DH, F = 2048, 576, 32, 128, 4608
WS_XN = 0
WS_HF = 0x0300000
WS_OF = 0x1600000
WS_WT = 0x2600000
WS_SP = 0x3000000
WS_FLAG = 0x4400000
WS_DBG = 0x4800000
WS_BYTES = 268435456
ARG = dict(x=0, k=8, v=16, wq=24, wo=32, bx=40, wg=48, wu=56, wd=64, out=72, dbg=80, ws=88)
```

```python
import re

TRANS = ("v_exp_f32", "v_log_f32", "v_rcp_f32", "v_rsq_f32", "v_sqrt_f32", "v_sin_f32", "v_cos_f32")
REG_RE = re.compile(r"(?<![\w.])(-?)(?:abs\()?([vas])(?:(\d+)|\[(\d+):(\d+)\])(?![\w])")


def regs_of(tok):
    tok = tok.strip()
    out = []
    for m in REG_RE.finditer(tok):
        f = m.group(2)
        if m.group(3) is not None:
            out.append((f, int(m.group(3))))
        else:
            out += [(f, r) for r in range(int(m.group(4)), int(m.group(5)) + 1)]
    for name in ("vcc", "m0", "exec"):
        if re.search(r"(?<![\w])" + name + r"(?![\w])", tok):
            out.append((name, 0))
    return out


class Ins:
    def __init__(self, text, tag=None):
        self.text = text.strip()
        self.tag = tag
        t = self.text.split(";")[0].strip()
        self.rd, self.wr = set(), set()
        self.srcc = set()
        self.srcab = set()
        self.data = set()
        if t.endswith(":") or t.startswith("."):
            self.op, self.kind = t, "label"
            return
        parts = t.split(None, 1)
        self.op = op = parts[0]
        ops = [o.strip() for o in parts[1].split(",")] if len(parts) > 1 else []
        base = re.sub(r"_(e32|e64|sdwa|dpp)$", "", op)
        self.base = base
        self.dpp = bool(re.search(r"row_|quad_perm|wave_", t))
        R = [regs_of(o) for o in ops]
        allr = [r for x in R for r in x]
        if op == "WAITVM":
            self.kind = "pseudo"
            self.arg = parts[1].strip()
        elif op.startswith("v_mfma"):
            self.kind = "mfma"
            self.passes = 8 if "32x32" in op else 4
            self.wr = set(R[0]); self.srcab = set(R[1] + R[2]); self.srcc = set(R[3])
            self.rd = self.srcab | self.srcc
        elif op.startswith("v_"):
            self.kind = "trans" if base in TRANS else "valu"
            if base.startswith("v_permlane"):
                self.wr = set(allr); self.rd = set(allr)
            elif base in ("v_add_co_u32", "v_addc_co_u32", "v_sub_co_u32", "v_mad_u64_u32"):
                self.wr = set(R[0] + R[1]); self.rd = set(r for x in R[2:] for r in x)
            else:
                self.wr = set(R[0]); self.rd = set(r for x in R[1:] for r in x)
                if base in ("v_fmac_f32", "v_dot2c_f32_bf16", "v_writelane_b32") or self.dpp:
                    self.rd |= self.wr
            if base == "v_nop":
                self.wr = set(); self.rd = set()
        elif op.startswith("ds_"):
            self.kind = "ds"
            if "read" in op or "permute" in op or "swizzle" in op:
                self.wr = set(R[0]); self.rd = set(r for x in R[1:] for r in x)
            else:
                self.rd = set(allr)
        elif op.startswith("buffer_") or op.startswith("global_"):
            self.kind = "vmem"
            self.lds = bool(re.search(r"\blds\b", t)) or "_lds_" in op
            if op in ("buffer_inv", "buffer_wbl2"):
                pass
            elif self.lds:
                self.rd = set(allr) | {("m0", 0)}
            elif "load" in op:
                self.wr = set(R[0]); self.rd = set(r for x in R[1:] for r in x)
            elif "atomic" in op:
                self.rd = set(allr)
                if "sc0" in t:
                    self.wr = set(R[0])
            else:
                self.rd = set(allr)
                if "x4" in op or "x3" in op:
                    self.data = set(R[0] if op.startswith("buffer_") else R[1])
        elif op == "s_waitcnt":
            self.kind = "wait"
            m = re.search(r"vmcnt\((\d+)\)", t); self.vm = int(m.group(1)) if m else None
            m = re.search(r"lgkmcnt\((\d+)\)", t); self.lg = int(m.group(1)) if m else None
        elif op == "s_barrier":
            self.kind = "barrier"
        elif op == "s_nop":
            self.kind = "nop"; self.n = int(ops[0]) + 1
        elif op.startswith("s_cbranch") or op in ("s_branch", "s_endpgm", "s_setprio", "s_sleep"):
            self.kind = "branch"
        elif op.startswith("s_load") or op.startswith("s_mem") or op.startswith("s_buffer_load"):
            self.kind = "smem"
            self.wr = set(R[0]); self.rd = set(r for x in R[1:] for r in x)
        elif op.startswith("s_"):
            self.kind = "salu"
            if op.startswith("s_cmp") or op.startswith("s_bitcmp"):
                self.rd = set(allr)
            else:
                self.wr = set(R[0]); self.rd = set(r for x in R[1:] for r in x)
                if "saveexec" in op:
                    self.wr.add(("exec", 0))
        else:
            raise ValueError("unknown instruction: " + t)

    def isvalu(self):
        return self.kind in ("valu", "trans")

    def __repr__(self):
        return self.text


class Block:
    def __init__(self, name=""):
        self.name = name
        self.ins = []

    def __call__(self, text, tag=None):
        for line in text.strip().split("\n"):
            line = line.strip()
            if line and not line.startswith(";"):
                self.ins.append(Ins(line, tag))
        return self

    def add(self, x):
        if isinstance(x, Ins):
            self.ins.append(x)
        elif isinstance(x, str):
            self(x)
        else:
            for y in x:
                self.add(y)
        return self

    def text(self):
        out = []
        for i in self.ins:
            assert i.kind != "pseudo", i.text
            out.append(i.text if i.kind == "label" else "  " + i.text)
        return "\n".join(out) + "\n"


def insert_waits(traces):
    need = {}
    for _round in range(2):
        for trace in traces:
            seq = [(b, k) for b in trace for k in range(len(b.ins))]
            q = {"lg": [], "vm": []}
            done = {"lg": 0, "vm": 0}
            head = None
            for pos, (b, k) in enumerate(seq):
                i = b.ins[k]
                w = need.get((id(b), k))
                if w:
                    for c in ("lg", "vm"):
                        if w.get(c) is not None:
                            done[c] = max(done[c], len(q[c]) - w[c])
                if i.kind == "wait":
                    if i.vm is not None: done["vm"] = max(done["vm"], len(q["vm"]) - i.vm)
                    if i.lg is not None: done["lg"] = max(done["lg"], len(q["lg"]) - i.lg)
                    continue
                if i.kind == "pseudo":
                    tags = i.arg.split()
                    last = max([n for n, (o, _) in enumerate(q["vm"]) if o.tag in tags], default=-1)
                    if last >= done["vm"]:
                        n = len(q["vm"]) - 1 - last
                        e = need.setdefault((id(b), k), {})
                        e["vm"] = min(e.get("vm", 63), n, 63)
                        done["vm"] = max(done["vm"], len(q["vm"]) - e["vm"])
                    continue
                touched = i.rd | i.wr
                for c in ("lg", "vm"):
                    last = -1
                    for n in range(done[c], len(q[c])):
                        o = q[c][n][0]
                        hit = o.wr & touched
                        if hit and (o.wr & i.rd or not (o.kind == i.kind and i.kind in ("ds", "vmem"))):
                            last = n
                    if last < 0:
                        continue
                    if q[c][last][0].kind == "smem" or any(o.kind == "smem" for o, _ in q[c][done[c]:]):
                        raise AssertionError("scalar load consumed without explicit wait: " + i.text)
                    at, cnt = (b, k), len(q[c])
                    if i.kind == "mfma" and head is not None and q[c][last][1] < head[0] and head[1][0] is b:
                        at = head[1]
                        cnt = sum(1 for _, p in q[c] if p < head[0])
                    n = cnt - 1 - last
                    cap = 15 if c == "lg" else 63
                    e = need.setdefault((id(at[0]), at[1]), {})
                    e[c] = min(e.get(c, cap), n, cap)
                    done[c] = max(done[c], cnt - e[c])
                if i.kind in ("ds", "smem"):
                    q["lg"].append((i, pos))
                elif i.kind == "vmem":
                    q["vm"].append((i, pos))
                    assert len(q["vm"]) - done["vm"] <= 63 or True
                if i.kind == "mfma":
                    head = (pos + 1, (b, k + 1))
                elif i.kind in ("barrier", "label", "branch"):
                    head = None
    blocks = {id(b): b for t in traces for b in t}
    for bid, b in blocks.items():
        new = []
        for k in range(len(b.ins) + 1):
            w = need.get((bid, k))
            if w:
                s = "s_waitcnt"
                if w.get("vm") is not None: s += f" vmcnt({w['vm']})"
                if w.get("lg") is not None: s += f" lgkmcnt({w['lg']})"
                new.append(Ins(s))
            if k < len(b.ins) and b.ins[k].kind != "pseudo":
                new.append(b.ins[k])
        merged = []
        for i in new:
            if i.kind == "wait" and merged and merged[-1].kind == "wait":
                p = merged[-1]
                vm = min([x for x in (p.vm, i.vm) if x is not None], default=None)
                lg = min([x for x in (p.lg, i.lg) if x is not None], default=None)
                s = "s_waitcnt" + (f" vmcnt({vm})" if vm is not None else "") + (f" lgkmcnt({lg})" if lg is not None else "")
                merged[-1] = Ins(s)
            else:
                merged.append(i)
        b.ins = merged


def _vec(regs):
    return {r for r in regs if r[0] in ("v", "a")}


def _sc(regs):
    return {r for r in regs if r[0] in ("s", "vcc")}


def hazard(p, c):
    n = 0
    if p.isvalu():
        wv = _vec(p.wr)
        if c.kind == "mfma" and wv & c.rd: n = max(n, 2)
        if c.isvalu():
            if p.kind == "trans" and c.kind != "trans" and wv & c.rd: n = max(n, 1)
            if c.base in ("v_readfirstlane_b32", "v_readlane_b32") and wv & c.rd: n = max(n, 1)
            if (c.base.startswith("v_permlane") or c.dpp) and wv & c.rd: n = max(n, 2)
            if _sc(p.wr) & c.rd: n = max(n, 4 if c.base in ("v_readlane_b32", "v_writelane_b32") else 2)
            if "sdwa" in p.op and wv & (c.rd | c.wr): n = max(n, 1)
        if c.kind == "vmem" and _sc(p.wr) & c.rd: n = max(n, 5)
        if c.kind in ("salu", "branch") and _sc(p.wr) & c.rd: n = max(n, 1)
    if p.kind == "mfma":
        f = {4: (6, 8, 3), 8: (10, 12, 7)}[p.passes]
        if c.kind == "mfma":
            if p.wr & c.srcab: n = max(n, f[1])
            if p.wr & c.srcc and (p.wr != c.srcc or p.passes != c.passes): n = max(n, f[0])
            if p.wr & c.wr and p.wr != c.srcc: n = max(n, f[0])
        elif c.isvalu() or c.kind in ("vmem", "ds"):
            if p.wr & (c.rd | c.wr): n = max(n, f[1])
            if p.srcc & c.wr: n = max(n, f[2])
    if p.kind == "salu" and ("m0", 0) in p.wr and c.kind == "vmem" and ("m0", 0) in c.rd: n = max(n, 1)
    if p.kind == "vmem" and p.data and p.data & c.wr: n = max(n, 2)
    return n


def pad_hazards(traces, verbose=False):
    total = 0
    for _round in range(3):
        pads = {}
        for trace in traces:
            seq = [(b, k) for b in trace for k in range(len(b.ins)) if b.ins[k].kind != "label"]
            for pos, (b, k) in enumerate(seq):
                c = b.ins[k]
                dist = 0
                for back in range(pos - 1, max(pos - 14, -1), -1):
                    p = seq[back][0].ins[seq[back][1]]
                    h = hazard(p, c)
                    if h > dist:
                        key = (id(b), k)
                        if h - dist > pads.get(key, (0,))[0]:
                            pads[key] = (h - dist, p.text)
                    dist += p.n if p.kind == "nop" else 1
                    dist += pads.get((id(seq[back][0]), seq[back][1]), (0,))[0]
                    if dist >= 13:
                        break
        if not pads:
            break
        blocks = {id(b): b for t in traces for b in t}
        for bid, b in blocks.items():
            new = []
            for k, i in enumerate(b.ins):
                if (bid, k) in pads:
                    n = pads[(bid, k)][0]
                    total += n
                    if verbose:
                        print(f"pad {n} in {b.name}: {pads[(bid, k)][1]}  ->  {i.text}")
                    new.append(Ins(f"s_nop {n - 1}"))
                new.append(i)
            b.ins = new
    return total


def estimate(block):
    cyc, gap, free, nm, over = 0, None, False, 0, []
    span = 0
    prev = None
    for i in block.ins:
        if i.kind == "label":
            continue
        if i.kind == "mfma":
            if gap is not None:
                cyc += max(span, 8 + gap)
                if 8 + gap > span: over.append((nm, 8 + gap - span))
            gap, free, span = 0, True, i.passes * 4
            nm += 1
        else:
            c = 8 if i.kind == "trans" else (4 * i.n if i.kind == "nop" else 4)
            if i.kind == "vmem": c = 8
            if i.kind in ("ds", "vmem") and prev is not None and prev.isvalu(): c += 8
            if free and i.kind in ("salu", "wait", "nop", "branch", "barrier"): c -= 4
            free = False
            if gap is None: cyc += c
            else: gap += c
        prev = i
    if gap is not None:
        cyc += max(span, 8 + gap)
    return cyc, nm, over
```

```python
import math
from isa import *
from sched import *
from common import *
from k_ln import srd

MF = "v_mfma_f32_16x16x32_bf16"
LOG2E = math.log2(math.e)
QSCALE = LOG2E * DH ** -0.5

WS, WQ, WG, WU, SK, SV, WT, WD = 4, 8, 12, 16, 20, 24, 28, 32
sJ, sW, sRB = 36, 37, 38
sX, sMW2, sWa, sH2, sMW, sH, sMK, sMV, sKo, sVo, sCnt, sC, sT0, sT1, sT2, sMT, sO, sRetry = range(56, 74)
sColG, sColT, sHb, sHt, sTs, sTd, sTstep = range(74, 81)
vXA, vXB = 1, 2
vDG, vDT, vDQ = 3, 6, 9
vTG, vTT, vTQ = 12, 20, 24
vDK, vDV, vRK, vRV = 28, 32, 34, 38
vTL, vTR, vL16 = 46, 48, 50
vPC, vPD = 60, 62
vTMP = 52
ACC = (64, 128)
vAF = 192
vQ, vS, vNEG, vLS, vP = 128, 64, 96, 112, 192
aO, aL, aONE, aK, aV, aT = 0, 128, 144, 160, 192, 224
L_K, L_V, L_W, L_T, L_FLAG = 0, 81920, 32768, 147456, 155648
RING = 4
LDS_BYTES = 163840


def f2u(x):
    import struct
    return "0x%08x" % struct.unpack("<I", struct.pack("<f", x))[0]


def r4(f, n):
    return f"{f}[{n}:{n+3}]"


def xreg(ks, qb):
    return r4("a", (ks * 4 + qb) * 4) if ks < 16 else r4("v", 224 + ((ks - 16) * 4 + qb) * 4)


def vslot(s):
    return ((s + 3) % 4) * 16384


T0 = 216


def setup(b):
    t = T0
    b(f"""att_kernel:
    s_cmp_ge_u32 s2, 256
    s_cbranch_scc1 att_end
    s_load_dwordx4 s[40:43], s[0:1], {ARG['k']}
    s_load_dwordx4 s[44:47], s[0:1], {ARG['wq']}
    s_load_dwordx4 s[48:51], s[0:1], {ARG['wg']}
    s_load_dwordx2 s[52:53], s[0:1], {ARG['wd']}
    s_load_dwordx2 s[54:55], s[0:1], {ARG['ws']}
    s_getpc_b64 s[82:83]
    v_lshlrev_b32 v{t}, 5, v0
    v_mov_b32 v{vPC+1}, s83
    v_add_co_u32 v{vPC}, vcc, s82, v{t}
    v_addc_co_u32 v{vPC+1}, vcc, 0, v{vPC+1}, vcc
    global_load_dword v{vPD}, v[{vPC}:{vPC+1}], off
    v_lshrrev_b32 v{t}, 6, v0
    v_and_b32 v{t+1}, 63, v0
    s_and_b32 s{sJ}, s2, 31
    v_readfirstlane_b32 s{sW}, v{t}
    v_lshlrev_b32 v{vL16}, 4, v{t+1}
    s_lshr_b32 s{sRB}, s2, 5
    s_lshl_b32 s{sRB}, s{sRB}, 2
    s_add_u32 s{sRB}, s{sRB}, s{sW}
    s_and_b32 s{sT0}, s{sJ}, 1
    s_lshl_b32 s{sT0}, s{sT0}, 11
    s_xor_b32 s{sT1}, s{sT0}, 2048
    v_add_u32 v{vXA}, s{sT0}, v{vL16}
    v_add_u32 v{vXB}, s{sT1}, v{vL16}""")
    b(f"""v_lshrrev_b32 v{t+2}, 3, v{t+1}
    s_mul_i32 s{sT2}, s{sW}, 48
    v_add_u32 v{t+2}, s{sT2}, v{t+2}
    v_lshrrev_b32 v{t+3}, 4, v{t+1}
    v_lshlrev_b32 v{t+3}, 1, v{t+3}
    v_and_b32 v{t+4}, 7, v{t+1}
    v_xor_b32 v{t+3}, v{t+3}, v{t+4}
    v_lshlrev_b32 v{t+3}, 4, v{t+3}
    v_mul_u32_u24 v{vDG}, {2*F}, v{t+2}
    v_add_u32 v{vDG}, v{vDG}, v{t+3}
    v_add_u32 v{vDG+1}, {8*2*F-1024}, v{vDG}
    v_add_u32 v{vDG+2}, {2*(8*2*F-1024)}, v{vDG}
    s_mul_i32 s{sX}, s{sRB}, {18*4096}
    s_add_u32 s{sX}, s{sX}, {WS_XN}
    s_mul_i32 s{sMW}, s{sW}, 6144
    s_add_u32 s{sMW}, s{sMW}, {L_W}
    s_lshl_b32 s{sColG}, s{sJ}, 8
    s_waitcnt lgkmcnt(0)""")
    srd(b, WG, 48, D * F * 2)
    srd(b, WS, 54, WS_BYTES)


def setup2(b):
    t = T0
    srd(b, WU, 50, D * F * 2)
    srd(b, WQ, 44, D * H * DH * 2)
    b(f"""s_lshl_b32 s{sT1}, s{sJ}, 19
    s_add_u32 s40, s40, s{sT1}
    s_addc_u32 s41, s41, 0
    s_add_u32 s42, s42, s{sT1}
    s_addc_u32 s43, s43, 0""")
    srd(b, SK, 40, S * DH * 2)
    srd(b, SV, 42, S * DH * 2)
    b(f"""v_lshlrev_b32 v{vDQ}, 13, v{t+2}
    v_add_u32 v{vDQ}, v{vDQ}, v{t+3}
    v_add_u32 v{vDQ+1}, {8*8192-1024}, v{vDQ}
    v_add_u32 v{vDQ+2}, {2*(8*8192-1024)}, v{vDQ}""")
    c, row, g1, key, g, a, z = t + 4, t + 5, t + 6, t + 7, t + 2, t + 3, t
    b(f"""v_and_b32 v{c}, 3, v{t+1}
    v_lshrrev_b32 v{row}, 2, v{t+1}
    v_bfe_u32 v{g1}, v{t+1}, 4, 1
    v_and_b32 v{key}, 15, v{t+1}
    v_lshrrev_b32 v{g}, 4, v{t+1}
    v_add_u32 v{a}, s{sT2}, v{row}
    v_mul_u32_u24 v{a}, {2*F}, v{a}
    v_lshlrev_b32 v{z}, 1, v{g1}
    v_xor_b32 v{z}, v{z}, v{c}
    v_lshl_add_u32 v{vDT}, v{z}, 4, v{a}
    v_add_u32 v{vDT+1}, {16*2*F-1024}, v{vDT}
    v_add_u32 v{vDT+2}, {2*(16*2*F-1024)}, v{vDT}
    s_mul_i32 s{sMW2}, s{sW}, 3072
    s_add_u32 s{sMW2}, s{sMW2}, {L_W}
    s_lshr_b32 s{sT0}, s{sJ}, 1
    s_lshl_b32 s{sColT}, s{sT0}, 6
    s_add_u32 s{sColT}, s{sColT}, 8192
    s_lshl_b32 s{sT1}, s2, 2
    s_add_u32 s{sT1}, s{sT1}, s{sW}
    s_sub_u32 s{sT2}, s{sT1}, 468
    s_cmp_lt_u32 s{sT1}, 468
    s_cselect_b32 s{WT}, s46, s52
    s_cselect_b32 s{WT+1}, s47, s53
    s_cselect_b32 s{WT+2}, {H*DH*D*2:#x}, s{WG+2}
    s_cselect_b32 s{sTstep}, 26, 29
    s_cselect_b32 s{sTd}, 0, {H*DH*D*2:#x}
    s_cselect_b32 s{sT1}, s{sT1}, s{sT2}
    s_and_b32 s{WT+1}, s{WT+1}, 0xffff
    s_mov_b32 s{WT+3}, 0x20000
    s_mul_i32 s{sTstep}, s{sTstep}, 36864
    s_add_u32 s{sTd}, s{sTd}, {WS_WT:#x}
    s_add_u32 s{WD}, s54, s{sTd}
    s_addc_u32 s{WD+1}, s55, 0
    s_and_b32 s{WD+1}, s{WD+1}, 0xffff
    s_mov_b32 s{WD+2}, s{WT+2}
    s_mov_b32 s{WD+3}, 0x20000
    s_cmp_lt_u32 s{sT1}, 522
    s_cselect_b32 s{sT1}, s{sT1}, 4000
    s_lshl_b32 s{sTd}, s{sT1}, 11
    s_mul_i32 s{sT2}, s{sT1}, 3641
    s_lshr_b32 s{sT2}, s{sT2}, 16
    s_mul_i32 s{sTs}, s{sT2}, 18
    s_sub_u32 s{sT1}, s{sT1}, s{sTs}
    s_lshl_b32 s{sT1}, s{sT1}, 6
    s_mul_i32 s{sTs}, s{sT2}, 36864
    s_add_u32 s{sTs}, s{sTs}, s{sT1}
    s_lshl_b32 s{sMT}, s{sW}, 11
    s_add_u32 s{sMT}, s{sMT}, {L_T}
    v_mul_u32_u24 v{a}, {2*D}, v{row}
    v_lshl_add_u32 v{vTL}, v{z}, 4, v{a}
    v_add_u32 v{vTL+1}, {16*2*D-1024}, v{vTL}
    s_mul_i32 s{sHb}, s{sRB}, {144*4096}
    s_add_u32 s{sHb}, s{sHb}, {WS_HF:#x}
    s_add_u32 s{sT0}, s{sT0}, 128
    s_lshl_b32 s{sT0}, s{sT0}, 12
    s_add_u32 s{sHt}, s{sHb}, s{sT0}
    s_lshl_b32 s{sT0}, s{sJ}, 14
    s_add_u32 s{sHb}, s{sHb}, s{sT0}
    s_lshl_b32 s{sO}, s{sRB}, 19
    s_add_u32 s{sO}, s{sO}, s{sT0}
    s_add_u32 s{sO}, s{sO}, {WS_OF:#x}
    s_lshl_b32 s{sMK}, s{sW}, 12
    s_add_u32 s{sMV}, s{sMK}, {L_V}
    s_mov_b32 s{sRetry}, 0""")
    b(f"""v_lshlrev_b32 v{a}, 6, v{row}
    v_add_u32 v{a}, {L_W}, v{a}
    v_lshl_add_u32 v{a}, v{c}, 3, v{a}
    v_lshl_add_u32 v{vTT}, v{g1}, 5, v{a}
    v_xor_b32 v{vTT+1}, 32, v{vTT}
    s_sub_u32 s{sT0}, s{sMT}, {L_W}
    v_add_u32 v{vTR}, s{sT0}, v{vTT}
    v_add_u32 v{vTR+1}, s{sT0}, v{vTT+1}
    v_add_u32 v{vTT+2}, 49152, v{vTT}
    v_add_u32 v{vTT+3}, 49152, v{vTT+1}
    v_lshlrev_b32 v{a}, 7, v{row}
    v_add_u32 v{a}, {L_W}, v{a}
    v_bfe_u32 v{z}, v{t+1}, 3, 2
    v_lshl_add_u32 v{vTG}, v{z}, 5, v{a}
    v_lshl_add_u32 v{vTG}, v{c}, 3, v{vTG}
    v_lshlrev_b32 v{z}, 1, v{z}
    v_xor_b32 v{z}, v{z}, v{c}
    v_lshl_add_u32 v{vTQ}, v{z}, 4, v{a}
    v_xor_b32 v{vTQ+1}, 64, v{vTQ}
    v_add_u32 v{vTQ+2}, 49152, v{vTQ}
    v_add_u32 v{vTQ+3}, 49152, v{vTQ+1}""")
    for n in range(1, 4):
        b(f"v_xor_b32 v{vTG+n}, {32*n}, v{vTG}")
    for n in range(4):
        b(f"v_add_u32 v{vTG+4+n}, 49152, v{vTG+n}")
    b(f"v_lshlrev_b32 v{a}, 8, v{g}\nv_add_u32 v{a}, s{sMK}, v{a}")
    for i in range(4):
        b(f"""v_add_u32 v{z}, {4*i}, v{g}
        v_xor_b32 v{z}, v{z}, v{key}
        v_lshl_add_u32 v{vDK+i}, v{z}, 4, v{a}""")
    for i in range(2):
        b(f"""v_add_u32 v{z}, {4*i}, v{g}
        v_lshlrev_b32 v{z}, 1, v{z}
        v_xor_b32 v{z}, v{z}, v{key}
        v_lshl_add_u32 v{vDV+i}, v{z}, 4, v{a}""")
    b(f"v_lshlrev_b32 v{a}, 8, v{key}")
    for kk in range(4):
        b(f"""v_add_u32 v{z}, {4*kk}, v{g}
        v_xor_b32 v{z}, v{z}, v{key}
        v_lshl_add_u32 v{vRK+kk}, v{z}, 4, v{a}""")
    b(f"""v_lshlrev_b32 v{a}, 8, v{row}
    v_lshl_add_u32 v{a}, v{c}, 3, v{a}
    v_add_u32 v{a}, {L_V}, v{a}
    v_and_b32 v{z}, 7, v{row}
    v_lshl_add_u32 v{vRV}, v{z}, 5, v{a}""")
    for dt in range(1, 8):
        b(f"v_xor_b32 v{vRV+dt}, {32*dt}, v{vRV}")
    b(f"""
    v_mov_b32 v{a}, {L_FLAG}
    v_mov_b32 v{z}, 0
    ds_write_b32 v{a}, v{z}""")


PREFETCH = [60, 440, 880, 1320, 1560]
PASSES = [("g", 4, 0), ("u", 4, 0), ("g", 4, 1), ("u", 4, 1), ("T", 2, 0), ("Q", 4, 0), ("Q", 4, 1)]


def w_dma(cidx):
    p, c = divmod(cidx, 3)
    kind, _, i2 = PASSES[p]
    out = []
    for s in range(2):
        if kind == "T":
            if s == 0:
                out.append(f"s_add_u32 s{sWa}, s{sColT}, {c*192*2*F}")
            out.append(f"s_add_u32 m0, s{sMW2}, {(cidx%RING)*24576 + s*12288}")
            r, vo = (WG, WU)[s], vDT
        else:
            pitch = 8192 if kind == "Q" else 2 * F
            out.append(f"s_add_u32 s{sWa}, s{sColG}, {(c*192 + s*24)*pitch + i2*128}")
            out.append(f"s_add_u32 m0, s{sMW}, {(cidx%RING)*24576 + s*3072}")
            r, vo = {"g": (WG, vDG), "u": (WU, vDG), "Q": (WQ, vDQ)}[kind]
        for i in range(3):
            out.append(f"buffer_load_dwordx4 v{vo+i}, s[{r}:{r+3}], s{sWa} offen offset:{i*1024} lds")
    return out


def x_loads(ks):
    out = [f"buffer_load_dwordx4 {xreg(ks, qb)}, v{vXA + qb//2}, s[{WS}:{WS+3}], s{sX} offen offset:{(qb&1)*1024}"
           for qb in range(4)]
    out.append(f"s_add_u32 s{sX}, s{sX}, 4096")
    return out


def kv_dma(which, slot):
    if which == "K":
        out = [f"s_add_u32 m0, s{sMK}, {L_K + slot*16384}"]
        out += [f"buffer_load_dwordx4 v{vDK+t}, s[{SK}:{SK+3}], s{sKo} offen offset:{t*1024} lds" for t in range(4)]
        out.append(f"s_add_u32 s{sKo}, s{sKo}, 16384")
    else:
        out = [f"s_add_u32 m0, s{sMV}, {vslot(slot)}"]
        out += [f"buffer_load_dwordx4 v{vDV+(t&1)}, s[{SV}:{SV+3}], s{sVo} offen offset:{t*1024} lds" for t in range(4)]
        out.append(f"s_add_u32 s{sVo}, s{sVo}, 16384")
    return out


def k_read(unit, kb, kk):
    return f"ds_read_b128 {r4('a', aK + (kb%2)*16 + kk*4)}, v{vRK+kk} offset:{L_K + (unit%4)*16384 + kb*4096}"


def v_read(unit, dt, m, half):
    r = aV + ((dt // 2) % 2) * 16 + ((dt % 2) * 2 + m) * 4 + half * 2
    return f"ds_read_b64_tr_b16 a[{r}:{r+1}], v{vRV+dt} offset:{vslot(unit%4) + m*8192 + half*4096}"


def sigmoid(regs):
    out = []
    for op in (f"v_mul_f32 v{{0}}, s{sC}, v{{0}}", "v_exp_f32 v{0}, v{0}", "v_add_f32 v{0}, 1.0, v{0}", "v_rcp_f32 v{0}, v{0}"):
        out += [op.format(r) for r in regs]
    return out


def h_store(reg, qb, sdst):
    return f"buffer_store_dwordx4 {r4('v', reg)}, v{vXA + qb//2}, s[{WS}:{WS+3}], s{sdst} offen offset:{(qb&1)*1024}"


def q_epilogue(acc, half):
    out = []
    for qb in range(4):
        base = acc + qb * 16
        for e in range(16):
            out.append(f"v_mul_f32 v{base+e}, s{sC}, v{base+e}")
        for e in range(8):
            out.append(f"v_cvt_pk_bf16_f32 v{vQ+qb*16+half*8+e}, v{base+2*e}, v{base+2*e+1}")
    return out


def phase1(pro, b, stamps=False, knock=None):
    pro.add([Ins(t, "W0") for t in w_dma(0)])
    for ks in range(6):
        pro.add(x_loads(ks))
        if ks == 2:
            setup2(pro)
    pro(f"s_mov_b32 s{sC}, {f2u(-LOG2E)}\ns_mov_b32 s{sKo}, 0\ns_mov_b32 s{sVo}, 0")
    mf, groups = [], []
    for p, (kind, nqb, _) in enumerate(PASSES):
        acc = ACC[p % 2]
        for c in range(3):
            for kg in range(2):
                for t in range(4):
                    gi = len(groups)
                    groups.append(dict(p=p, c=c, kg=kg, t=t, start=len(mf), kind=kind))
                    for qb in range(nqb):
                        d = r4("v", acc + qb * 16 + t * 4)
                        for k in range(3):
                            ks = c * 6 + kg * 3 + k
                            a = r4("v", vAF + (gi % 2) * 12 + k * 4)
                            mf.append(f"{MF} {d}, {a}, {xreg(ks, qb)}, {'0' if ks == 0 else d}")
    N = len(mf)
    pstart = [next(g["start"] for g in groups if g["p"] == p) for p in range(7)] + [N]

    def reads(gi):
        g = groups[gi]
        out = []
        slot = (g["p"] * 3 + g["c"]) % RING
        hi = slot // 2
        for k in range(3):
            for half in range(2):
                off = 24576 * (slot % 2)
                kh = (g["kg"] * 3 + k) * 2 + half
                if g["kind"] == "T":
                    off += (g["t"] // 2) * 12288 + kh * 1024
                    va = vTT + 2 * hi + g["t"] % 2
                elif g["kind"] == "Q":
                    off += kh * 2048 + 8 * (g["t"] % 2)
                    va = vTQ + 2 * hi + g["t"] // 2
                else:
                    off += kh * 2048
                    va = vTG + 4 * hi + g["t"]
                r = vAF + (gi % 2) * 12 + k * 4 + half * 2
                out.append(f"ds_read_b64_tr_b16 v[{r}:{r+1}], v{va} offset:{off}")
        return out

    pro("WAITVM W0\ns_waitcnt lgkmcnt(0)\ns_barrier")
    if stamps: stamp(pro, 1)
    pro.add(reads(0))
    items, pinned, bar = [], {}, {-2: -1, -1: 96}
    for gi, g in enumerate(groups):
        if gi % 8 == 7:
            cidx = gi // 8
            gp = g["start"] - 1
            bar[cidx] = gp
            tags = f"W{cidx+1}" if cidx < 20 else "K0"
            pinned[gp] = [Ins("WAITVM " + tags), Ins("s_waitcnt lgkmcnt(0)"), Ins("s_barrier")]
    for gi, g in enumerate(groups[:-1]):
        st, nx = g["start"], groups[gi + 1]["start"]
        for k, t in enumerate(reads(gi + 1)):
            rdy = st - 1 + (k if nx - st == 12 else k // 2)
            items.append(Item(t, rdy, rdy + 2))

    def paced(ts, start, step, tag=None, space=5, slack=6):
        pos = start
        for t in ts:
            vm = t.startswith("buffer") or t.startswith("global")
            items.append(Item(t, pos - (0 if vm else 3), pos + slack, tag=tag, prio=pos - 20, space=space))
            if vm:
                pos += step
        return pos

    for c in (1, 2):
        pos = paced(w_dma(c), (c - 1) * 96 + 1, 3, tag=f"W{c}", space=3)
        for ks in range(6 * c, 6 * c + 6):
            pos = paced(x_loads(ks), pos, 3, space=3)
    pos = 192
    for tgt in range(3, 21):
        cidx = tgt - RING
        tail = PASSES[tgt // 3][0] == "T"
        start = max(bar[cidx] + 4 if cidx >= 0 else 0, pos)
        step = 6 if tgt < 7 else min((bar[cidx + 1] - bar[cidx] - 4) // 6, 10 if tail else 8)
        pos = paced(w_dma(tgt), start, step, tag=f"W{tgt}", space=min(step, 9 if tail else 5))
    for i, (which, slot) in enumerate((("K", 0), ("V", 0), ("K", 1))):
        pos = paced(kv_dma(which, slot), max(pos, bar[17] - 40 + 40 * i), 8, tag=f"{which}{slot}")
    if PREFETCH:
        for i, g in enumerate(PREFETCH):
            items.append(Item(f"v_add_co_u32 v{vPC}, vcc, 0x2000, v{vPC}", g - 20, g - 4))
            items.append(Item(f"v_addc_co_u32 v{vPC+1}, vcc, 0, v{vPC+1}, vcc", g - 18, g - 2))
            paced([f"global_load_dword v{vPD}, v[{vPC}:{vPC+1}], off"], g, 1)

    def spread(ts, st, en, space=5):
        for k, t in enumerate(ts):
            items.append(Item(t, st, en, prio=st + 16 + k * (en - st - 26) // len(ts), space=space))

    for p in range(6):
        kind, nqb, i2 = PASSES[p]
        st, en = pstart[p + 1], pstart[p + 2]
        acc = ACC[p % 2]
        if kind == "g":
            lo, hi = st - 30, en - 6
            for t in range(4):
                for q2 in range(2):
                    ts = sigmoid([acc + qb * 16 + t * 4 + e for qb in (2 * q2, 2 * q2 + 1) for e in range(4)])
                    j = t * 2 + q2
                    for k, x in enumerate(ts):
                        items.append(Item(x, st - 48 + t * 12 + q2 * 6 + 10, None,
                                          prio=lo + 16 + (j * 32 + k) * (hi - lo - 16) // 256))
        elif kind == "u":
            glen = 3 * PASSES[p + 1][1]
            for t in range(4):
                for qb in range(4):
                    done = st - 48 + t * 12 + qb * 3 + 2
                    need = st + t * glen + qb * 3 - 2 if qb < PASSES[p + 1][1] else en - 30
                    for e in range(4):
                        r = qb * 16 + t * 4 + e
                        items.append(Item(f"v_mul_f32 v{acc+r}, v{ACC[0]+r}, v{acc+r}", done + 5, need))
            ts = [f"s_add_u32 s{sH}, s{sHb}, {i2*8192}", f"s_add_u32 s{sH2}, s{sHb}, {i2*8192+4096}"]
            dst = [acc + qb * 16 for qb in range(4)] if i2 == 0 else [ACC[0] + 32 + qb * 8 for qb in range(4)]
            for qb in range(4):
                for e in range(8):
                    ts.append(f"v_cvt_pk_bf16_f32 v{dst[qb]+e}, v{acc+qb*16+2*e}, v{acc+qb*16+2*e+1}")
            spread(ts, st + 6, en - 4)
            last = en - 6 if i2 == 0 else pstart[p + 3] - 60
            first = st + (40 if i2 == 0 else 70)
            for k in range(8):
                g = first + k * (last - first) // 8
                items.append(Item(h_store(dst[k // 2] + 4 * (k % 2), k // 2, (sH, sH2)[k % 2]), g, last, prio=g))
        elif kind == "T":
            ts = []
            for qb in range(2):
                base = acc + qb * 16
                ts += sigmoid(range(base, base + 8))
                ts += [f"v_mul_f32 v{base+e}, v{base+e}, v{base+8+e}" for e in range(8)]
                ts += [f"v_cvt_pk_bf16_f32 v{base+e}, v{base+2*e}, v{base+2*e+1}" for e in range(4)]
            spread(ts, st + 4, en - 50)
            for qb in range(2):
                items.append(Item(h_store(acc + qb * 16, qb, sHt), en - 50 + 30 * qb, en - 4))
        else:
            spread([f"s_mov_b32 s{sC}, {f2u(QSCALE)}"] + q_epilogue(acc, 0), st + 4, en - 4)
    free9 = next(g["start"] for g in groups if g["p"] == 6 and g["c"] == 2)
    for r in range(144):
        ks = r // 16
        st = next(g["start"] for g in groups if g["p"] == 6 and g["c"] * 6 + g["kg"] * 3 > ks)
        items.append(Item(f"v_accvgpr_write_b32 a{r}, 0", st + 2, N - 6))
    ones = [f"v_and_b32 v{vTMP}, 3, v0", f"v_cmp_eq_u32 vcc, 0, v{vTMP}", f"v_mov_b32 v{vTMP+1}, 0x3f803f80",
            f"v_mov_b32 v{vTMP+2}, 0", f"v_cndmask_b32 v{vTMP}, v{vTMP+2}, v{vTMP+1}, vcc"]
    ones += [f"v_accvgpr_write_b32 a{aONE+i}, v{vTMP}" for i in range(4)]
    for k, t in enumerate(ones):
        items.append(Item(t, free9 + 2 + 2 * k, N - 6))
    for kk in range(4):
        items.append(Item(k_read(0, 0, kk), bar[20], N - 2))
    gaps = schedule(N, items, pinned)
    if stamps:
        t = Block()
        stamp(t, 2)
        gaps[pstart[1] - 1] = gaps[pstart[1] - 1] + t.ins
        for p in range(2, 7):
            t = Block()
            stamp(t, 7 + p)
            gaps[pstart[p] - 1] = gaps[pstart[p] - 1] + t.ins
    if knock:
        import re
        for gi in range(pstart[1], N):
            gaps[gi] = [x for x in gaps[gi] if not re.search(knock, (x.ins if isinstance(x, Item) else x).text)]
    weave(b, mf, gaps)
    b.add(q_epilogue(ACC[0], 1))


def first_max(b):
    for qb in range(4):
        d = r4("v", vS + qb * 4)
        for kk in range(4):
            b(f"{MF} {d}, {r4('a', aK + kk*4)}, {r4('v', vQ + qb*16 + kk*4)}, {'0' if kk == 0 else d}")
    for qb in range(4):
        s = vS + qb * 4
        b(f"v_max3_f32 v{vTMP+qb}, v{s}, v{s+1}, v{s+2}\nv_max_f32 v{vTMP+qb}, v{vTMP+qb}, v{s+3}")


def finish_max(b):
    for op in ("v_permlane32_swap_b32", "v_permlane16_swap_b32"):
        for qb in range(4):
            b(f"v_mov_b32 v{vTMP+4+qb}, v{vTMP+qb}")
        for qb in range(4):
            b(f"{op} v{vTMP+qb}, v{vTMP+4+qb}")
        for qb in range(4):
            b(f"v_max_f32 v{vTMP+qb}, v{vTMP+qb}, v{vTMP+4+qb}")
    for qb in range(4):
        for i in range(4):
            b(f"v_sub_f32 v{vNEG+qb*4+i}, 0, v{vTMP+qb}")


class Attn:
    def __init__(self, sumq=(0, 1, 2, 3), lag=7, barback=16):
        self.sumq = sumq
        self.mk = []
        self.qk0, self.pv0 = [], []
        for i in range(4):
            self.qk0.append(len(self.mk))
            self.mk += [("qk", i, qb, kk) for qb in range(4) for kk in range(4)]
            self.pv0.append(len(self.mk))
            self.mk += [("pv", dt, qb, m) for dt in (2 * i, 2 * i + 1) for qb in range(4) for m in range(2)]
            if i in sumq:
                self.mk += [("sum", 0, i, m) for m in range(2)]
        self.G = G = len(self.mk)
        self.bar = G - barback
        NS = 6
        items, pinned = [], {}
        for u in range(NS):
            o = u * G
            pinned[o + self.bar] = [Ins("s_waitcnt vmcnt(8)"), Ins("s_barrier")]
            pinned[o + G - 1] = [Ins("s_cmp_eq_u32 s0, 0"), Ins("s_cbranch_scc1 x")]
            n = u + 1
            for kb in range(4):
                q0 = o + self.qk0[kb]
                q1 = o + (self.qk0[kb + 1] if kb < 3 else G)
                for e in range(16):
                    qb, t = divmod(e, 4)
                    g = q0 + lag + e * (q1 - q0) // 16
                    while g in pinned or (g % G) in (self.bar, G - 1):
                        g += 1
                    items.append(self.item(("exp", n, kb, qb, t), g, g))
                    if qb not in sumq:
                        items.append(self.item(("add", n, kb, qb, t), g + 1, g + 12))
                    if t % 2 == 1:
                        items.append(self.item(("cvt", n, kb, qb, t), g + 1, g + 5))
            for kb in range(4):
                use = o + self.qk0[kb]
                rdy = (o - G + self.bar) if kb < 2 else (o + self.qk0[kb - 2] + 16)
                rdy = max(rdy, use - 30)
                for kk in range(4):
                    items.append(self.item(("kr", n, kb, kk, 0), max(rdy, 0), max(use - 8 + kk, 0)))
            for dt in range(8):
                use = o + self.pv0[dt // 2] + (dt % 2) * 8
                rdy = (o - G + self.bar) if dt < 4 else (o + self.pv0[dt // 2 - 2] + 16)
                if dt in (2, 3):
                    rdy = max(rdy, o)
                rdy = max(rdy, use - 34)
                for m in range(2):
                    for half in range(2):
                        items.append(self.item(("vr", u, dt, m, half), max(rdy, 0), max(use - 8 + m, 0)))
            for wi, which in enumerate("KV"):
                for k in range(6):
                    pos = o + self.bar + 2 + (wi * 4 + min(max(k - 1, 0), 3)) * (G // 8)
                    pos += -1 if k == 0 else 0
                    items.append(self.item(("dma", u + 4 - wi, which, k, 0), pos, pos + 14))
        gaps = schedule(NS * G, items, pinned)

        def pat(u):
            return [[(it.key[0], it.key[1] - u) + it.key[2:] for it in gaps[u * G + g] if isinstance(it, Item)]
                    for g in range(G)]
        assert pat(3) == pat(4), "schedule is not periodic"
        self.pat = pat(3)

    def item(self, key, ready, deadline):
        return Item(self.text(key), ready, deadline, key=key)

    def text(self, key):
        k, n = key[0], key[1]
        if k in ("exp", "add", "cvt"):
            kb, qb, t = key[2:]
            s = vS + (kb % 2) * 16 + qb * 4 + t
            if k == "exp":
                return f"v_exp_f32 v{s}, v{s}"
            if k == "add":
                return f"v_add_f32 v{vLS+qb}, v{vLS+qb}, v{s}"
            p = vP + (n % 2) * 32 + qb * 8 + (kb // 2) * 4 + (kb % 2) * 2 + t // 2
            return f"v_cvt_pk_bf16_f32 v{p}, v{s-1}, v{s}"
        if k == "kr":
            return k_read(n, key[2], key[3])
        if k == "vr":
            return v_read(n, *key[2:])
        return kv_dma(key[2], n % 4)[key[3]]

    def mfma(self, u, key):
        k, i, qb, z = key
        if k == "qk":
            d = r4("v", vS + (i % 2) * 16 + qb * 4)
            c = r4("v", vNEG + qb * 4) if z == 0 else d
            return f"{MF} {d}, {r4('a', aK + (i%2)*16 + z*4)}, {r4('v', vQ + qb*16 + z*4)}, {c}"
        p = r4("v", vP + (u % 2) * 32 + qb * 8 + z * 4)
        if k == "pv":
            d = r4("a", aO + (i * 4 + qb) * 4)
            return f"{MF} {d}, {r4('a', aV + ((i//2)%2)*16 + ((i%2)*2 + z)*4)}, {p}, {d}"
        d = r4("a", aL + qb * 4)
        return f"{MF} {d}, {r4('a', aONE)}, {p}, {d}"

    def valid(self, key, n, last):
        k = key[0]
        if k == "dma":
            return n >= (2 if key[2] == "K" else 1) and not last
        if k == "kr" and n == 0 and key[2] == 0:
            return False
        return 0 <= n <= 31

    def place(self, extras):
        out, g = {}, 0
        for lo, text, tag in extras:
            ins = Ins(text, tag)
            g = max(g, lo)
            while True:
                used = [Ins(self.text((k[0], 4 + k[1]) + k[2:])) for k in self.pat[g]] + out.get(g, [])
                busy = sum(cost(i) for i in used if i.kind not in ("salu", "pseudo"))
                near = any(k[0] == "dma" and 1 <= k[3] <= 4 for d in (-2, -1, 1, 2) for k in self.pat[(g + d) % self.G])
                if g in (self.bar, self.G - 1):
                    ok = False
                elif ins.kind in ("salu", "pseudo"):
                    ok = not any(i.kind in ("salu", "vmem", "pseudo") for i in used)
                elif ins.kind == "vmem":
                    ok = not used and not near
                else:
                    ok = busy <= 4
                if ok:
                    break
                g += 1
            out.setdefault(g, []).append(ins)
            g += 4 if ins.kind == "vmem" else 1
        return out

    def wt_extras(self, u):
        kend = next(g for g in range(self.G) if ("dma", 2, "V", 4, 0) in self.pat[g])
        vset = next(g for g in range(self.G) if ("dma", 4, "K", 0, 0) in self.pat[g])
        if u % 4 == 0:
            ex = [(kend + 1, f"s_mov_b32 m0, s{sMT}", None)]
            ex += [(0, f"buffer_load_dwordx4 v{vTL+i}, s[{WT}:{WT+3}], s{sTs} offen offset:{i*1024} lds", "WT") for i in range(2)]
            out = self.place(ex + [(0, f"s_add_u32 s{sTs}, s{sTs}, s{sTstep}", None)])
            assert max(g for g, l in out.items() if any(i.kind == "vmem" for i in l)) < vset
            return out
        if u % 4 == 2:
            ex = [(40, "WAITVM WT", None)]
            ex += [(0, f"ds_read_b64_tr_b16 a[{aT+4*n+2*h}:{aT+4*n+2*h+1}], v{vTR+n} offset:{h*1024}", None)
                   for n in range(2) for h in range(2)]
            ex += [(76 + 20 * n, f"buffer_store_dwordx4 {r4('a', aT+4*n)}, v{vL16}, s[{WD}:{WD+3}], s{sTd} offen offset:{n*1024}", None)
                   for n in range(2)]
            return self.place(ex + [(0, f"s_add_u32 s{sTd}, s{sTd}, s{sTstep}", None)])
        return {}

    def slot(self, b, u, tail=None):
        last = u == 31
        extra = self.wt_extras(u) if 0 <= u < 31 else {}
        for g in range(self.G):
            mk = self.mk[g]
            unit = u + 1 if mk[0] == "qk" else u
            if 0 <= unit <= 31:
                b(self.mfma(u, mk))
            if g == self.bar and u >= -1 and not last:
                b(f"WAITVM K{(u+2)%4} V{(u+1)%4}\ns_barrier")
            if g == self.G - 1 and tail:
                pre, post = tail
                b(pre)
            if u == -2 and g < self.bar:
                continue
            here = list(extra.get(g, []))
            for key in self.pat[g]:
                n = u + key[1]
                if self.valid(key, n, last):
                    full = (key[0], n) + key[2:]
                    here.append(Ins(self.text(full), f"{key[2]}{n%4}" if key[0] == "dma" else None))
            here.sort(key=lambda i: ORDER[i.kind])
            assert g != self.G - 1 or not any(i.kind == "salu" for i in here)
            b.add(here)
        if tail:
            b(tail[1])


def o_epilogue(b, sumq):
    for qb in range(4):
        if qb in sumq:
            b(f"v_accvgpr_read_b32 v{vLS+qb}, a{aL+qb*4}")
    rest = [qb for qb in range(4) if qb not in sumq]
    for op in ("v_permlane32_swap_b32", "v_permlane16_swap_b32"):
        for qb in rest:
            b(f"v_mov_b32 v{vTMP+qb}, v{vLS+qb}")
        for qb in rest:
            b(f"{op} v{vLS+qb}, v{vTMP+qb}")
        for qb in rest:
            b(f"v_add_f32 v{vLS+qb}, v{vLS+qb}, v{vTMP+qb}")
    for qb in range(4):
        b(f"v_rcp_f32 v{vLS+4+2*qb}, v{vLS+qb}")
    for qb in range(4):
        b(f"v_mov_b32 v{vLS+5+2*qb}, v{vLS+4+2*qb}")
    b(f"s_mov_b32 s{sT0}, s{sO}")
    n = 0
    for p in range(4):
        for qb in range(4):
            t = vP + (n % 4) * 16
            n += 1
            for e in range(8):
                b(f"v_accvgpr_read_b32 v{t+e}, a{aO + ((2*p + e//4)*4 + qb)*4 + e%4}")
            for e in range(4):
                b(f"v_pk_mul_f32 v[{t+2*e}:{t+2*e+1}], v[{t+2*e}:{t+2*e+1}], v[{vLS+4+2*qb}:{vLS+5+2*qb}]")
            for e in range(4):
                b(f"v_cvt_pk_bf16_f32 v{t+8+e}, v{t+2*e}, v{t+2*e+1}")
            vx = vXA if qb < 2 else vXB
            b(f"buffer_store_dwordx4 {r4('v', t+8)}, v{vx}, s[{WS}:{WS+3}], s{sT0} offen offset:{(qb&1)*1024}")
        if p < 3:
            b(f"s_add_u32 s{sT0}, s{sT0}, 4096")


SAFE_L = 2.0 ** 40


def stamp(b, n):
    b(f"""s_memtime s[84:85]
    s_memrealtime s[86:87]
    s_waitcnt lgkmcnt(0)""")
    if n == 0:
        b("s_mov_b32 s88, s84\ns_mov_b32 s89, s86\nv_mov_b32 v51, 0")
    b(f"""s_sub_u32 s84, s84, s88
    s_sub_u32 s86, s86, s89
    v_writelane_b32 v51, s84, {2*n}
    v_writelane_b32 v51, s86, {2*n+1}""")


def stamp_flush(b):
    b(f"""s_lshl_b32 s84, s2, 8
    s_add_u32 s84, s84, {WS_DBG:#x}
    v_lshlrev_b32 v52, 2, v0
    v_cmp_gt_u32 vcc, 64, v0
    s_and_saveexec_b64 s[86:87], vcc
    s_cbranch_execz att_nostamp
    buffer_store_dword v51, v52, s[{WS}:{WS+3}], s84 offen
    att_nostamp:
    s_mov_b64 exec, -1""")


def gen_att(sumq=(0, 1, 2, 3), lag=7, barback=16, verbose=False, force_retry=False, stamps=False, knock=None, knock2=None):
    A = Attn(sumq, lag, barback)
    pro, p1, fm, ap, lp, lp2, fin, rt, rl, rt2, end = (Block(n) for n in
        ("pro", "p1", "fmax", "apro", "loopabc", "loopd", "final", "retry", "retryloop", "retry2", "end"))
    setup(pro)
    if stamps: stamp(pro, 0)
    phase1(pro, p1, stamps, knock)
    if stamps: stamp(p1, 3)
    if knock or knock2: p1(f"s_mov_b32 s{sRetry}, 1")
    first_max(fm)
    ap("att_restart:")
    finish_max(ap)
    for qb in range(4):
        if qb not in sumq:
            ap(f"v_mov_b32 v{vLS+qb}, 0")
    ap(f"s_mov_b32 s{sCnt}, 7")
    A.slot(ap, -2)
    A.slot(ap, -1)
    if stamps: stamp(ap, 4)
    lp(".p2align 6\natt_loop:")
    A.slot(lp, 0)
    A.slot(lp, 1)
    A.slot(lp, 2, (f"s_cmp_eq_u32 s{sCnt}, 0", "s_cbranch_scc1 att_final"))
    A.slot(lp2, 3, (f"s_sub_u32 s{sCnt}, s{sCnt}, 1", "s_branch att_loop"))
    fin("att_final:")
    if stamps: stamp(fin, 5)
    A.slot(fin, 31)
    if stamps: stamp(fin, 6)
    o_epilogue(fin, sumq)
    if stamps:
        stamp(fin, 7)
        fin("s_waitcnt vmcnt(0)")
        stamp(fin, 8)
        stamp_flush(fin)
    fin(f"""v_add_f32 v{vTMP+1}, v{vLS}, v{vLS+1}
    v_add_f32 v{vTMP+2}, v{vLS+2}, v{vLS+3}
    v_add_f32 v{vTMP+1}, v{vTMP+1}, v{vTMP+2}
    v_mov_b32 v{vTMP+2}, {f2u(0.0 if force_retry else SAFE_L)}
    v_cmp_nge_f32 vcc, v{vTMP+2}, v{vTMP+1}
    v_mov_b32 v{vTMP+3}, {L_FLAG}
    v_mov_b32 v{vTMP+4}, 1
    s_and_saveexec_b64 s[44:45], vcc
    s_cbranch_execz att_noflag
    ds_write_b32 v{vTMP+3}, v{vTMP+4}
    att_noflag:
    s_mov_b64 exec, -1
    s_waitcnt lgkmcnt(0)
    s_barrier
    ds_read_b32 v{vTMP+4}, v{vTMP+3}
    s_waitcnt lgkmcnt(0)
    v_readfirstlane_b32 s{sT0}, v{vTMP+4}
    s_cmp_gt_u32 s{sT0}, s{sRetry}
    s_cbranch_scc0 att_end""")
    rt(f"""s_mov_b32 s{sRetry}, 1
    s_mov_b32 s{sKo}, 0
    s_mov_b32 s{sCnt}, 32
    s_waitcnt vmcnt(0)""")
    for qb in range(4):
        rt(f"v_mov_b32 v{vTMP+qb}, 0xff800000")
    rl("att_maxloop:\ns_barrier")
    rl.add(kv_dma("K", 0))
    rl("s_waitcnt vmcnt(0)\ns_barrier")
    for kb in range(4):
        for kk in range(4):
            rl(k_read(0, kb, kk))
        for qb in range(4):
            d = r4("v", vS + qb * 4)
            for kk in range(4):
                rl(f"{MF} {d}, {r4('a', aK + (kb%2)*16 + kk*4)}, {r4('v', vQ + qb*16 + kk*4)}, {'0' if kk == 0 else d}")
        for qb in range(4):
            s = vS + qb * 4
            rl(f"v_max3_f32 v{vTMP+qb}, v{vTMP+qb}, v{s}, v{s+1}\nv_max3_f32 v{vTMP+qb}, v{vTMP+qb}, v{s+2}, v{s+3}")
    rl(f"s_sub_u32 s{sCnt}, s{sCnt}, 1\ns_cmp_lg_u32 s{sCnt}, 0\ns_cbranch_scc1 att_maxloop")
    rt2(f"s_barrier\ns_mov_b32 s{sKo}, 0\ns_mov_b32 s{sVo}, 0")
    for which, slot in (("K", 0), ("V", 0), ("K", 1)):
        rt2.add([Ins(t, f"{which}{slot}") for t in kv_dma(which, slot)])
    for r in range(144):
        rt2(f"v_accvgpr_write_b32 a{r}, 0")
    rt2("s_waitcnt vmcnt(0)\ns_barrier")
    for kk in range(4):
        rt2(k_read(0, 0, kk))
    rt2("s_waitcnt lgkmcnt(0)\ns_branch att_restart")
    end("att_end:\ns_endpgm")
    if knock2:
        import re
        for blk in (lp, lp2):
            blk.ins = [x for x in blk.ins if not re.search(knock2, x.text)]
    main = [pro, p1, fm, ap, lp, lp2, lp, lp2, lp, fin]
    traces = [main + [end], main + [rt, rl, rl, rt2, ap, lp, lp2, lp, fin, end]]
    insert_waits(traces)
    n = pad_hazards(traces, verbose)
    if verbose:
        print("pads", n)
        for blk in (pro, p1, fm, ap, lp, lp2, fin):
            c, nm, over = estimate(blk)
            print(blk.name, "est cycles", c, "mfma", nm, "ideal", nm * 16, "ninstr", len(blk.ins), "over", len(over), sum(o[1] for o in over))
            if blk is p1: print([o[0] for o in over])
    text = "".join(x.text() for x in (pro, p1, fm, ap, lp, lp2, fin, rt, rl, rt2, end))
    return dict(name="att_kernel", grid=256, block=256, lds=LDS_BYTES, vgpr=512, acc=256, sgpr=96, text=text)


if __name__ == "__main__":
    from build import assemble
    from k_ln import gen_ln
    assemble([gen_ln(), gen_att(verbose=True)], "a.s")
    assemble([gen_ln(), gen_att(stamps=True)], "a_st.s")
```

```python
from isa import *
from common import *


def srd(b, r, ptr, size):
    b(f"""s_mov_b32 s{r}, s{ptr}
    s_and_b32 s{r+1}, s{ptr+1}, 0xffff
    s_mov_b32 s{r+2}, {size:#x}
    s_mov_b32 s{r+3}, 0x20000""")


def row_allreduce(b, v, t):
    for r in (8, 4, 2, 1):
        b(f"v_mov_b32_dpp v{t}, v{v} row_ror:{r} row_mask:0xf bank_mask:0xf")
        b(f"v_add_f32 v{v}, v{v}, v{t}")


def gen_ln():
    b = Block("ln")
    b(f"""ln_kernel:
    s_cmp_ge_u32 s2, 256
    s_cbranch_scc1 ln_end
    s_load_dwordx2 s[4:5], s[0:1], {ARG['x']}
    s_load_dwordx2 s[6:7], s[0:1], {ARG['ws']}
    v_lshrrev_b32 v1, 4, v0
    s_lshl_b32 s3, s2, 3
    v_add_u32 v1, s3, v1
    v_and_b32 v2, 15, v0
    v_mul_u32_u24 v3, {D*2}, v1
    v_lshl_add_u32 v3, v2, 3, v3
    s_waitcnt lgkmcnt(0)""")
    srd(b, 8, 4, S * D * 2)
    srd(b, 12, 6, WS_BYTES)
    for i in range(9):
        b(f"buffer_load_dwordx2 v[{10+2*i}:{11+2*i}], v3, s[8:11], 0 offen offset:{i*128}")
    b(f"""v_lshrrev_b32 v4, 6, v1
    v_mul_u32_u24 v4, {18*4096}, v4
    v_lshrrev_b32 v5, 3, v2
    v_lshl_add_u32 v4, v5, 12, v4
    v_bfe_u32 v5, v1, 4, 2
    v_lshl_add_u32 v4, v5, 10, v4
    v_and_b32 v5, 3, v2
    v_lshl_add_u32 v4, v5, 8, v4
    v_and_b32 v5, 15, v1
    v_lshl_add_u32 v4, v5, 4, v4
    v_bfe_u32 v5, v2, 2, 1
    v_lshl_add_u32 v4, v5, 3, v4
    v_mov_b32 v6, 0
    v_lshlrev_b32 v5, 2, v0
    s_lshl_b32 s16, s2, 9
    s_add_u32 s16, s16, {WS_FLAG:#x}
    buffer_store_dword v6, v5, s[12:15], s16 offen""")
    X = 32
    for p in range(18):
        b(f"v_lshlrev_b32 v{X+2*p}, 16, v{10+p}")
        b(f"v_and_b32 v{X+2*p+1}, 0xffff0000, v{10+p}")
    for c in range(4):
        b(f"v_add_f32 v{70+c}, v{X+c}, v{X+c+4}")
    for e in range(8, 36):
        b(f"v_add_f32 v{70+e%4}, v{70+e%4}, v{X+e}")
    b("v_add_f32 v70, v70, v71\nv_add_f32 v72, v72, v73\nv_add_f32 v70, v70, v72")
    row_allreduce(b, 70, 71)
    b(f"v_mul_f32 v70, {1.0/D!r}, v70")
    for e in range(36):
        b(f"v_sub_f32 v{76+e%4}, v{X+e}, v70")
        if e < 4:
            b(f"v_mul_f32 v{72+e}, v{76+e}, v{76+e}")
        else:
            b(f"v_fmac_f32 v{72+e%4}, v{76+e%4}, v{76+e%4}")
    b("v_add_f32 v72, v72, v73\nv_add_f32 v74, v74, v75\nv_add_f32 v72, v72, v74")
    row_allreduce(b, 72, 71)
    b(f"""v_mul_f32 v72, {1.0/D!r}, v72
    v_cvt_pk_bf16_f32 v70, v70, v72
    v_and_b32 v72, 0xffff0000, v70
    v_lshlrev_b32 v70, 16, v70
    v_add_f32 v72, 0x3727c5ac, v72
    v_cvt_pk_bf16_f32 v72, v72, v72
    v_lshlrev_b32 v72, 16, v72
    v_sqrt_f32 v72, v72
    v_cvt_pk_bf16_f32 v72, v72, v72
    v_lshlrev_b32 v72, 16, v72
    v_rcp_f32 v72, v72
    s_mov_b32 s16, {WS_XN}""")
    for p in range(18):
        a, c = X + 2 * p, X + 2 * p + 1
        b(f"""v_sub_f32 v{a}, v{a}, v70
        v_sub_f32 v{c}, v{c}, v70
        v_cvt_pk_bf16_f32 v{a}, v{a}, v{c}
        v_and_b32 v{c}, 0xffff0000, v{a}
        v_lshlrev_b32 v{a}, 16, v{a}
        v_mul_f32 v{a}, v{a}, v72
        v_mul_f32 v{c}, v{c}, v72
        v_cvt_pk_bf16_f32 v{10+p}, v{a}, v{c}""")
        if p % 2 == 1:
            b(f"buffer_store_dwordx2 v[{10+p-1}:{10+p}], v4, s[12:15], s16 offen")
            b("s_add_u32 s16, s16, 8192")
    b("ln_end:\ns_endpgm")
    insert_waits([[b]])
    pad_hazards([[b]])
    return dict(name="ln_kernel", grid=256, block=128, lds=0, vgpr=80, acc=80, sgpr=24, text=b.text())
```

```python
from isa import Ins


class Item:
    def __init__(self, text, ready, deadline=None, tag=None, key=None, prio=None, space=5):
        self.ins = Ins(text, tag)
        self.ready = ready
        self.deadline = deadline if deadline is not None else 1 << 30
        self.prio = prio if prio is not None else self.deadline
        self.key = key
        self.space = space
        self.gap = None
        self.preds = []


def cost(i):
    if i.kind in ("trans", "vmem"):
        return 8
    return 4


ORDER = {"pseudo": 0, "wait": 0, "barrier": 1, "salu": 2, "branch": 2, "nop": 2, "ds": 3, "vmem": 3, "valu": 4, "trans": 4}


def schedule(ngaps, items, pinned=None, cap=8, keep_head=()):
    pinned = pinned or {}
    lastw, readers = {}, {}
    for n, it in enumerate(items):
        it.seq = n
        ps = set()
        for r in it.ins.rd:
            if r in lastw: ps.add(lastw[r])
        for r in it.ins.wr:
            if r in lastw: ps.add(lastw[r])
            ps.update(readers.get(r, ()))
        ps.discard(it)
        it.preds = list(ps) + it.preds
        for r in it.ins.rd:
            readers.setdefault(r, []).append(it)
        for r in it.ins.wr:
            lastw[r] = it
            readers[r] = []
    for it in reversed(items):
        for p in it.preds:
            p.deadline = min(p.deadline, it.deadline - 1)
            p.prio = min(p.prio, it.prio - 1)
    out = [[] for _ in range(ngaps + 1)]
    todo = sorted(items, key=lambda t: (t.prio, t.seq))
    vfree = 0
    for g in range(ngaps):
        left = cap
        head = g not in keep_head
        for p in pinned.get(g, ()):
            if p.kind == "pseudo":
                continue
            if head and p.kind in ("wait", "barrier", "salu", "branch"):
                head = False
            else:
                left -= cost(p)
        placed = []
        for it in todo:
            if it.ready > g or any(p.gap is None or p.gap >= g for p in it.preds):
                continue
            i = it.ins
            force = it.deadline <= g
            if i.kind == "salu":
                if any(x.ins.kind == "vmem" for x in placed) and not force:
                    continue
                if head:
                    head = False
                elif force:
                    left -= 4
                else:
                    continue
            else:
                c = cost(i)
                if i.kind == "vmem" and not force and (any(x.ins.kind == "salu" for x in placed) or g in keep_head):
                    continue
                if c > left and not force:
                    continue
                if i.kind == "vmem":
                    if g < vfree and not force:
                        continue
                    vfree = g + it.space
                left -= c
            it.gap = g
            placed.append(it)
        if placed:
            todo = [t for t in todo if t.gap is None]
        placed.sort(key=lambda t: (ORDER[t.ins.kind], t.seq))
        out[g] = list(pinned.get(g, ())) + placed
    todo.sort(key=lambda t: t.seq)
    out[ngaps] = list(pinned.get(ngaps, ())) + todo
    return out


def weave(block, mfmas, gaps):
    for g, m in enumerate(mfmas):
        block.add(m)
        for it in gaps[g]:
            block.add(it.ins if isinstance(it, Item) else it)
    for it in gaps[len(mfmas)]:
        block.add(it.ins if isinstance(it, Item) else it)
```

```python
from isa import *
from sched import *
from common import *
from k_ln import srd
from k_att import MF, LOG2E, f2u, r4

WS, SX, SO = 4, 8, 12
sW, sRole, sA0, sA1, sW0, sW1, sCnt, sT0, sT1, sT2, sFlag, sOwn, sOth, sXo, sC, sSpin = range(20, 36)
vA, vW, vLW, vLR, vXO, vZ, vF, vPC, vPD = 1, 5, 8, 11, 12, 13, 14, 16, 18
vX = 20
vACC = 112
L_FLAG = 110592
LDS_BYTES = 110592 + 256
SPIN = 24


def frag(buf, n):
    r = buf * 104 + n * 4
    return r4("a", r) if r < 256 else r4("v", 56 + r - 256)


def xf(buf, m, b):
    return frag(buf, m * 4 + b)


def wf(buf, m, t):
    return frag(buf, 8 + t * 2 + m)


def acc(t, b):
    return vACC + (b * 9 + t) * 4


def loads(buf):
    def lx(m, b):
        return f"buffer_load_dwordx4 {xf(buf, m, b)}, v{vA+b}, s[{WS}:{WS+3}], s{sA0+m} offen"

    def lw(m, t):
        return f"buffer_load_dwordx4 {wf(buf, m, t)}, v{vW+t//4}, s[{WS}:{WS+3}], s{sW0+m} offen offset:{t%4*1024}"
    out = [lw(0, 0), lx(0, 0), lw(1, 0), lx(1, 0)]
    for b in range(1, 4):
        out += [lx(0, b), lx(1, b)]
    out += [f"s_add_u32 s{sA0}, s{sA0}, 32768", f"s_add_u32 s{sA1}, s{sA1}, 32768"]
    for t in range(1, 9):
        out += [lw(0, t), lw(1, t)]
    out += [f"s_add_u32 s{sW0}, s{sW0}, {8*36864}", f"s_add_u32 s{sW1}, s{sW1}, {8*36864}"]
    return out


def stage(b, buf, prefetch, extra=None, tail=None):
    mf = []
    for t in range(9):
        for q in range(4):
            for m in range(2):
                d = r4("v", acc(t, q))
                mf.append(f"{MF} {d}, {wf(buf, m, t)}, {xf(buf, m, q)}, {d}")
    items = []
    if prefetch:
        k = 0
        for x in loads((buf + 2) % 3):
            g = k * 68 // 26
            items.append(Item(x, g, g + 1, space=1))
            k += x.startswith("buffer")
    items += extra or []
    pinned = {}
    if tail:
        pinned[71] = [Ins(x) for x in tail]
    gaps = schedule(72, items, pinned)
    assert not tail or (len(gaps[71]) == len(tail) and not gaps[72])
    weave(b, mf, gaps)


def gen_out(verbose=False, stamps=False):
    names = ("pro", "py", "ps", "l0", "l1", "l2", "t1", "t2", "poll", "red", "fast", "red2", "silu", "dec", "pub", "pub2",
             "late", "fin", "end")
    pro, py, ps, l0, l1, l2, t1, t2, poll, red, fast, red2, silu, dec, pub, pub2, late, fin, end = (Block(n) for n in names)
    t = 40
    pro(f"""out_kernel:
    s_cmp_ge_u32 s2, 256
    s_cbranch_scc1 out_end
    s_load_dwordx2 s[40:41], s[0:1], {ARG['x']}
    s_load_dwordx2 s[42:43], s[0:1], {ARG['out']}
    s_load_dwordx2 s[44:45], s[0:1], {ARG['ws']}
    s_getpc_b64 s[46:47]
    v_lshlrev_b32 v{t}, 5, v0
    v_mov_b32 v{vPC+1}, s47
    v_add_co_u32 v{vPC}, vcc, s46, v{t}
    v_addc_co_u32 v{vPC+1}, vcc, 0, v{vPC+1}, vcc
    global_load_dword v{vPD}, v[{vPC}:{vPC+1}], off
    v_lshrrev_b32 v{t}, 6, v0
    v_and_b32 v{t+1}, 63, v0
    v_readfirstlane_b32 s{sW}, v{t}
    v_lshlrev_b32 v{vW}, 4, v{t+1}
    v_add_u32 v{vW+1}, 4096, v{vW}
    v_add_u32 v{vW+2}, 8192, v{vW}
    v_lshl_add_u32 v{vA}, v{t}, 10, v{vW}
    v_xor_b32 v{vA+1}, 1024, v{vA}
    v_xor_b32 v{vA+2}, 2048, v{vA}
    v_xor_b32 v{vA+3}, 3072, v{vA}
    s_bfe_u32 s{sRole}, s2, 0x10002
    s_and_b32 s{sT0}, s2, 3
    s_lshl_b32 s{sT0}, s{sT0}, 3
    s_lshr_b32 s{sT1}, s2, 5
    s_add_u32 s{sT0}, s{sT0}, s{sT1}
    s_bfe_u32 s{sT1}, s2, 0x20003
    s_cmp_eq_u32 s{sRole}, 0
    s_cselect_b32 s{sA0}, 8, 9
    s_cselect_b32 s{sA1}, 0, {WS_HF - WS_OF + (1 << 32):#x}
    s_cselect_b32 s{sW0}, 0, 128
    s_mul_i32 s{sA0}, s{sA0}, s{sT0}
    s_lshl_b32 s{sA0}, s{sA0}, 4
    s_lshl_b32 s{sT2}, s{sW}, 1
    s_add_u32 s{sA0}, s{sA0}, s{sT2}
    s_lshl_b32 s{sA0}, s{sA0}, 12
    s_add_u32 s{sA0}, s{sA0}, s{sA1}
    s_add_u32 s{sA0}, s{sA0}, {WS_OF:#x}
    s_add_u32 s{sA1}, s{sA0}, 4096
    s_add_u32 s{sW0}, s{sW0}, s{sT2}
    s_lshl_b32 s{sW0}, s{sW0}, 2
    s_add_u32 s{sW0}, s{sW0}, s{sT1}
    s_mul_i32 s{sW0}, s{sW0}, 9216
    s_add_u32 s{sW0}, s{sW0}, {WS_WT:#x}
    s_add_u32 s{sW1}, s{sW0}, 36864
    s_waitcnt lgkmcnt(0)""")
    srd(pro, WS, 44, WS_BYTES)
    pro(f"s_cmp_eq_u32 s{sRole}, 0\ns_cbranch_scc1 out_pro_s")

    def rest(b):
        srd(b, SX, 40, S * D * 2)
        srd(b, SO, 42, S * D * 2)
        b(f"""s_lshl_b32 s{sT2}, s{sT0}, 2
        s_add_u32 s{sT2}, s{sT2}, s{sT1}
        s_lshl_b32 s{sFlag}, s{sT2}, 7
        s_add_u32 s{sFlag}, s{sFlag}, {WS_FLAG:#x}
        s_lshl_b32 s{sT2}, s{sT2}, 3
        s_add_u32 s{sT2}, s{sT2}, s{sW}
        s_lshl_b32 s{sOwn}, s{sRole}, 2
        s_xor_b32 s{sOth}, s{sOwn}, 4
        s_add_u32 s{sOwn}, s{sOwn}, s{sT2}
        s_add_u32 s{sOth}, s{sOth}, s{sT2}
        s_mul_i32 s{sOwn}, s{sOwn}, 9216
        s_mul_i32 s{sOth}, s{sOth}, 9216
        s_add_u32 s{sOwn}, s{sOwn}, {WS_SP:#x}
        s_add_u32 s{sOth}, s{sOth}, {WS_SP:#x}
        s_lshl_b32 s{sXo}, s{sT0}, 2
        s_add_u32 s{sXo}, s{sXo}, s{sW}
        s_mul_i32 s{sXo}, s{sXo}, {16*2*D}
        s_mul_i32 s{sT2}, s{sT1}, 288
        s_add_u32 s{sXo}, s{sXo}, s{sT2}
        s_mul_i32 s{sSpin}, s{sRole}, {SPIN}
        s_mov_b32 s{sC}, {f2u(-LOG2E)}
        v_and_b32 v{t+2}, 15, v0
        v_mul_u32_u24 v{vXO}, {2*D}, v{t+2}
        v_lshrrev_b32 v{t+2}, 4, v{t+1}
        v_lshl_add_u32 v{vXO}, v{t+2}, 3, v{vXO}
        v_mul_u32_u24 v{vLR}, 27648, v{t}
        v_add_u32 v{vLR}, v{vLR}, v{vW}
        v_mov_b32 v{vZ}, 0
        v_mov_b32 v{vF+1}, {L_FLAG}""")
        for q in range(1, 4):
            b(f"""v_xor_b32 v{t+2}, {q}, v{t}
            v_mul_u32_u24 v{t+2}, 27648, v{t+2}
            v_add_u32 v{t+2}, {(q-1)*9216}, v{t+2}
            v_add_u32 v{vLW+q-1}, v{t+2}, v{vW}""")
        for r in range(144):
            b(f"v_mov_b32 v{vACC+r}, 0")

    for blk, first, cnt, entry in ((py, 0, 5, None), (ps, 2, 4, "out_l2")):
        if entry:
            blk("out_pro_s:")
        blk.add(loads(first))
        rest(blk)
        blk.add(loads((first + 1) % 3))
        blk(f"s_mov_b32 s{sCnt}, {cnt}")
        blk(f"s_branch {entry or 'out_l0'}")
    l0(".p2align 6\nout_l0:")
    stage(l0, 0, True, tail=[f"s_cmp_eq_u32 s{sCnt}, 0", "s_cbranch_scc1 out_tail"])
    stage(l1, 1, True, tail=[f"s_sub_u32 s{sCnt}, s{sCnt}, 1"])
    l2("out_l2:")
    stage(l2, 2, True, tail=["s_branch out_l0"])
    t1("out_tail:")
    ex = [Item(f"buffer_load_dwordx2 v[{vX+2*i}:{vX+2*i+1}], v{vXO}, s[{SX}:{SX+3}], s{sXo} offen offset:{i*32}", 6 * i, 6 * i + 2)
          for i in range(9)]
    stage(t1, 1, False, ex)
    ex = [Item(f"ds_write_b128 v{vLW+q-1}, {r4('v', acc(i, q))} offset:{i*1024}", 8 * i + 2 * q + 6, None)
          for i in range(9) for q in range(1, 4)]
    ex.append(Item(f"buffer_load_dword v{vF}, v{vZ}, s[{WS}:{WS+3}], s{sFlag} offen sc1", 40, 41))
    stage(t2, 2, False, ex)
    poll(f"""s_cmp_lg_u32 s{sW}, 0
    s_cbranch_scc1 out_polled
    out_poll:
    s_waitcnt vmcnt(0)
    v_readfirstlane_b32 s{sT0}, v{vF}
    s_cmp_lg_u32 s{sT0}, 0
    s_cbranch_scc1 out_share
    s_cmp_eq_u32 s{sSpin}, 0
    s_cbranch_scc1 out_share
    s_sub_u32 s{sSpin}, s{sSpin}, 1
    buffer_load_dword v{vF}, v{vZ}, s[{WS}:{WS+3}], s{sFlag} offen sc1
    s_branch out_poll
    out_share:
    ds_write_b32 v{vF+1}, v{vF}
    out_polled:
    s_waitcnt vmcnt(0) lgkmcnt(0)
    s_barrier""")
    red(f"ds_read_b32 v{vF}, v{vF+1}")
    for i in range(9):
        for q in range(1, 4):
            red(f"ds_read_b128 {r4('v', acc(i, q))}, v{vLR} offset:{((q-1)*9+i)*1024}")
            if i == 3 and q == 3:
                red(f"v_readfirstlane_b32 s{sT0}, v{vF}")
    red(f"s_cmp_eq_u32 s{sT0}, 0\ns_cbranch_scc1 out_red2")
    P = 56

    def partner(b):
        for i in range(9):
            b(f"buffer_load_dwordx4 {r4('v', P+4*i)}, v{vW+i//4}, s[{WS}:{WS+3}], s{sOth} offen offset:{i%4*1024} sc1")
    partner(fast)
    red2("out_red2:")
    for i in range(9):
        for q in range(1, 4):
            for e in (0, 2):
                d, s_ = acc(i, 0) + e, acc(i, q) + e
                red2(f"v_pk_add_f32 v[{d}:{d+1}], v[{d}:{d+1}], v[{s_}:{s_+1}]")
    red2(f"s_cmp_eq_u32 s{sRole}, 0\ns_cbranch_scc1 out_decide")
    U = acc(0, 1)
    for r in range(36):
        silu(f"v_mul_f32 v{U+r}, s{sC}, v{vACC+r}")
    for r in range(36):
        silu(f"v_exp_f32 v{U+r}, v{U+r}")
    for r in range(36):
        silu(f"v_add_f32 v{U+r}, 1.0, v{U+r}")
    for r in range(36):
        silu(f"v_rcp_f32 v{U+r}, v{U+r}")
    for r in range(0, 36, 2):
        silu(f"v_pk_mul_f32 v[{vACC+r}:{vACC+r+1}], v[{vACC+r}:{vACC+r+1}], v[{U+r}:{U+r+1}]")
    dec(f"out_decide:\ns_cmp_lg_u32 s{sT0}, 0\ns_cbranch_scc1 out_final")
    for i in range(9):
        pub(f"buffer_store_dwordx4 {r4('v', vACC+4*i)}, v{vW+i//4}, s[{WS}:{WS+3}], s{sOwn} offen offset:{i%4*1024} sc1")
    pub(f"""s_waitcnt vmcnt(0)
    s_barrier
    s_cmp_lg_u32 s{sW}, 0
    s_cbranch_scc1 out_added
    v_mov_b32 v{vF}, 1
    s_mov_b64 exec, 1
    buffer_atomic_add v{vF}, v{vZ}, s[{WS}:{WS+3}], s{sFlag} offen sc0 sc1
    s_waitcnt vmcnt(0)
    ds_write_b32 v{vF+1}, v{vF}
    s_mov_b64 exec, -1""")
    pub2(f"""out_added:
    s_waitcnt lgkmcnt(0)
    s_barrier
    ds_read_b32 v{vF}, v{vF+1}
    s_waitcnt lgkmcnt(0)
    v_readfirstlane_b32 s{sT0}, v{vF}
    s_cmp_eq_u32 s{sT0}, 0
    s_cbranch_scc1 out_end""")
    partner(late)
    fin("out_final:")
    for i in range(18):
        fin(f"v_lshlrev_b32 v{U+2*i}, 16, v{vX+i}\nv_and_b32 v{U+2*i+1}, 0xffff0000, v{vX+i}")
    for i in range(9):
        for e in (0, 2):
            r = 4 * i + e
            fin(f"v_pk_fma_f32 v[{U+r}:{U+r+1}], v[{vACC+r}:{vACC+r+1}], v[{P+r}:{P+r+1}], v[{U+r}:{U+r+1}]")
        for e in (0, 2):
            r = 4 * i + e
            fin(f"v_cvt_pk_bf16_f32 v{vX+r//2}, v{U+r}, v{U+r+1}")
        fin(f"buffer_store_dwordx2 v[{vX+2*i}:{vX+2*i+1}], v{vXO}, s[{SO}:{SO+3}], s{sXo} offen offset:{i*32}")
    end("out_end:\ns_endpgm")
    a = [pro, py, l0, l1, l2, l0, l1, l2, l0, t1, t2, poll, red]
    c = [pro, ps, l2, l0, l1, l2, l0, t1, t2, poll, red]
    traces = [a + [fast, red2, silu, dec, fin, end], a + [red2, silu, dec, pub, pub2, late, fin, end],
              c + [fast, red2, dec, fin, end], c + [red2, dec, pub, pub2, late, fin, end]]
    insert_waits(traces)
    n = pad_hazards(traces, verbose)
    order = (pro, py, ps, l0, l1, l2, t1, t2, poll, red, fast, red2, silu, dec, pub, pub2, late, fin, end)
    if verbose:
        for blk in order:
            print(blk.name, estimate(blk)[:2], len(blk.ins))
    return dict(name="out_kernel", grid=256, block=256, lds=LDS_BYTES, vgpr=512, acc=256, sgpr=64,
                text="".join(x.text() for x in order))


if __name__ == "__main__":
    from build import assemble
    from k_ln import gen_ln
    from k_att import gen_att
    assemble([gen_ln(), gen_att(), gen_out(verbose=True)], f"cdna_kernels/{NAME}.s")
```

```python
import math
from isa import *
from sched import *
from common import *
from k_ln import srd

MF = "v_mfma_f32_16x16x32_bf16"
LOG2E = math.log2(math.e)
QSCALE = LOG2E * DH ** -0.5

WS, WQ, WG, WU, SK, SV, WT, WD = 4, 8, 12, 16, 20, 24, 28, 32
sJ, sW, sRB = 36, 37, 38
sX, sMW2, sWa, sH2, sMW, sH, sMK, sMV, sKo, sVo, sCnt, sC, sT0, sT1, sT2, sMT, sO, sRetry = range(56, 74)
sColG, sColT, sHb, sHt, sTs, sTd, sTstep = range(74, 81)
vXA, vXB = 1, 2
vDG, vDT, vDQ = 3, 6, 9
vTG, vTT, vTQ = 12, 20, 24
vDK, vDV, vRK, vRV = 28, 32, 34, 38
vTL, vTR, vL16 = 46, 48, 50
vPC, vPD = 60, 62
vTMP = 52
ACC = (64, 128)
vAF = 192
vQ, vS, vNEG, vLS, vP = 128, 64, 96, 112, 192
aO, aL, aONE, aK, aV, aT = 0, 128, 144, 160, 192, 224
L_K, L_V, L_W, L_T, L_FLAG = 0, 81920, 32768, 147456, 155648
RING = 4
LDS_BYTES = 163840


def f2u(x):
    import struct
    return "0x%08x" % struct.unpack("<I", struct.pack("<f", x))[0]


def r4(f, n):
    return f"{f}[{n}:{n+3}]"


def xreg(ks, qb):
    return r4("a", (ks * 4 + qb) * 4) if ks < 16 else r4("v", 224 + ((ks - 16) * 4 + qb) * 4)


def vslot(s):
    return ((s + 3) % 4) * 16384


T0 = 216


def setup(b):
    t = T0
    b(f"""att_kernel:
    s_cmp_ge_u32 s2, 256
    s_cbranch_scc1 att_end
    s_load_dwordx4 s[40:43], s[0:1], {ARG['k']}
    s_load_dwordx4 s[44:47], s[0:1], {ARG['wq']}
    s_load_dwordx4 s[48:51], s[0:1], {ARG['wg']}
    s_load_dwordx2 s[52:53], s[0:1], {ARG['wd']}
    s_load_dwordx2 s[54:55], s[0:1], {ARG['ws']}
    s_getpc_b64 s[82:83]
    v_lshlrev_b32 v{t}, 5, v0
    v_mov_b32 v{vPC+1}, s83
    v_add_co_u32 v{vPC}, vcc, s82, v{t}
    v_addc_co_u32 v{vPC+1}, vcc, 0, v{vPC+1}, vcc
    global_load_dword v{vPD}, v[{vPC}:{vPC+1}], off
    v_lshrrev_b32 v{t}, 6, v0
    v_and_b32 v{t+1}, 63, v0
    s_and_b32 s{sJ}, s2, 31
    v_readfirstlane_b32 s{sW}, v{t}
    v_lshlrev_b32 v{vL16}, 4, v{t+1}
    s_lshr_b32 s{sRB}, s2, 5
    s_lshl_b32 s{sRB}, s{sRB}, 2
    s_add_u32 s{sRB}, s{sRB}, s{sW}
    s_and_b32 s{sT0}, s{sJ}, 1
    s_lshl_b32 s{sT0}, s{sT0}, 11
    s_xor_b32 s{sT1}, s{sT0}, 2048
    v_add_u32 v{vXA}, s{sT0}, v{vL16}
    v_add_u32 v{vXB}, s{sT1}, v{vL16}""")
    b(f"""v_lshrrev_b32 v{t+2}, 3, v{t+1}
    s_mul_i32 s{sT2}, s{sW}, 48
    v_add_u32 v{t+2}, s{sT2}, v{t+2}
    v_lshrrev_b32 v{t+3}, 4, v{t+1}
    v_lshlrev_b32 v{t+3}, 1, v{t+3}
    v_and_b32 v{t+4}, 7, v{t+1}
    v_xor_b32 v{t+3}, v{t+3}, v{t+4}
    v_lshlrev_b32 v{t+3}, 4, v{t+3}
    v_mul_u32_u24 v{vDG}, {2*F}, v{t+2}
    v_add_u32 v{vDG}, v{vDG}, v{t+3}
    v_add_u32 v{vDG+1}, {8*2*F-1024}, v{vDG}
    v_add_u32 v{vDG+2}, {2*(8*2*F-1024)}, v{vDG}
    s_mul_i32 s{sX}, s{sRB}, {18*4096}
    s_add_u32 s{sX}, s{sX}, {WS_XN}
    s_mul_i32 s{sMW}, s{sW}, 6144
    s_add_u32 s{sMW}, s{sMW}, {L_W}
    s_lshl_b32 s{sColG}, s{sJ}, 8
    s_waitcnt lgkmcnt(0)""")
    srd(b, WG, 48, D * F * 2)
    srd(b, WS, 54, WS_BYTES)


def setup2(b):
    t = T0
    srd(b, WU, 50, D * F * 2)
    srd(b, WQ, 44, D * H * DH * 2)
    b(f"""s_lshl_b32 s{sT1}, s{sJ}, 19
    s_add_u32 s40, s40, s{sT1}
    s_addc_u32 s41, s41, 0
    s_add_u32 s42, s42, s{sT1}
    s_addc_u32 s43, s43, 0""")
    srd(b, SK, 40, S * DH * 2)
    srd(b, SV, 42, S * DH * 2)
    b(f"""v_lshlrev_b32 v{vDQ}, 13, v{t+2}
    v_add_u32 v{vDQ}, v{vDQ}, v{t+3}
    v_add_u32 v{vDQ+1}, {8*8192-1024}, v{vDQ}
    v_add_u32 v{vDQ+2}, {2*(8*8192-1024)}, v{vDQ}""")
    c, row, g1, key, g, a, z = t + 4, t + 5, t + 6, t + 7, t + 2, t + 3, t
    b(f"""v_and_b32 v{c}, 3, v{t+1}
    v_lshrrev_b32 v{row}, 2, v{t+1}
    v_bfe_u32 v{g1}, v{t+1}, 4, 1
    v_and_b32 v{key}, 15, v{t+1}
    v_lshrrev_b32 v{g}, 4, v{t+1}
    v_add_u32 v{a}, s{sT2}, v{row}
    v_mul_u32_u24 v{a}, {2*F}, v{a}
    v_lshlrev_b32 v{z}, 1, v{g1}
    v_xor_b32 v{z}, v{z}, v{c}
    v_lshl_add_u32 v{vDT}, v{z}, 4, v{a}
    v_add_u32 v{vDT+1}, {16*2*F-1024}, v{vDT}
    v_add_u32 v{vDT+2}, {2*(16*2*F-1024)}, v{vDT}
    s_mul_i32 s{sMW2}, s{sW}, 3072
    s_add_u32 s{sMW2}, s{sMW2}, {L_W}
    s_lshr_b32 s{sT0}, s{sJ}, 1
    s_lshl_b32 s{sColT}, s{sT0}, 6
    s_add_u32 s{sColT}, s{sColT}, 8192
    s_lshl_b32 s{sT1}, s2, 2
    s_add_u32 s{sT1}, s{sT1}, s{sW}
    s_sub_u32 s{sT2}, s{sT1}, 468
    s_cmp_lt_u32 s{sT1}, 468
    s_cselect_b32 s{WT}, s46, s52
    s_cselect_b32 s{WT+1}, s47, s53
    s_cselect_b32 s{WT+2}, {H*DH*D*2:#x}, s{WG+2}
    s_cselect_b32 s{sTstep}, 26, 29
    s_cselect_b32 s{sTd}, 0, {H*DH*D*2:#x}
    s_cselect_b32 s{sT1}, s{sT1}, s{sT2}
    s_and_b32 s{WT+1}, s{WT+1}, 0xffff
    s_mov_b32 s{WT+3}, 0x20000
    s_mul_i32 s{sTstep}, s{sTstep}, 36864
    s_add_u32 s{sTd}, s{sTd}, {WS_WT:#x}
    s_add_u32 s{WD}, s54, s{sTd}
    s_addc_u32 s{WD+1}, s55, 0
    s_and_b32 s{WD+1}, s{WD+1}, 0xffff
    s_mov_b32 s{WD+2}, s{WT+2}
    s_mov_b32 s{WD+3}, 0x20000
    s_cmp_lt_u32 s{sT1}, 522
    s_cselect_b32 s{sT1}, s{sT1}, 4000
    s_lshl_b32 s{sTd}, s{sT1}, 11
    s_mul_i32 s{sT2}, s{sT1}, 3641
    s_lshr_b32 s{sT2}, s{sT2}, 16
    s_mul_i32 s{sTs}, s{sT2}, 18
    s_sub_u32 s{sT1}, s{sT1}, s{sTs}
    s_lshl_b32 s{sT1}, s{sT1}, 6
    s_mul_i32 s{sTs}, s{sT2}, 36864
    s_add_u32 s{sTs}, s{sTs}, s{sT1}
    s_lshl_b32 s{sMT}, s{sW}, 11
    s_add_u32 s{sMT}, s{sMT}, {L_T}
    v_mul_u32_u24 v{a}, {2*D}, v{row}
    v_lshl_add_u32 v{vTL}, v{z}, 4, v{a}
    v_add_u32 v{vTL+1}, {16*2*D-1024}, v{vTL}
    s_mul_i32 s{sHb}, s{sRB}, {144*4096}
    s_add_u32 s{sHb}, s{sHb}, {WS_HF:#x}
    s_add_u32 s{sT0}, s{sT0}, 128
    s_lshl_b32 s{sT0}, s{sT0}, 12
    s_add_u32 s{sHt}, s{sHb}, s{sT0}
    s_lshl_b32 s{sT0}, s{sJ}, 14
    s_add_u32 s{sHb}, s{sHb}, s{sT0}
    s_lshl_b32 s{sO}, s{sRB}, 19
    s_add_u32 s{sO}, s{sO}, s{sT0}
    s_add_u32 s{sO}, s{sO}, {WS_OF:#x}
    s_lshl_b32 s{sMK}, s{sW}, 12
    s_add_u32 s{sMV}, s{sMK}, {L_V}
    s_mov_b32 s{sRetry}, 0""")
    b(f"""v_lshlrev_b32 v{a}, 6, v{row}
    v_add_u32 v{a}, {L_W}, v{a}
    v_lshl_add_u32 v{a}, v{c}, 3, v{a}
    v_lshl_add_u32 v{vTT}, v{g1}, 5, v{a}
    v_xor_b32 v{vTT+1}, 32, v{vTT}
    s_sub_u32 s{sT0}, s{sMT}, {L_W}
    v_add_u32 v{vTR}, s{sT0}, v{vTT}
    v_add_u32 v{vTR+1}, s{sT0}, v{vTT+1}
    v_add_u32 v{vTT+2}, 49152, v{vTT}
    v_add_u32 v{vTT+3}, 49152, v{vTT+1}
    v_lshlrev_b32 v{a}, 7, v{row}
    v_add_u32 v{a}, {L_W}, v{a}
    v_bfe_u32 v{z}, v{t+1}, 3, 2
    v_lshl_add_u32 v{vTG}, v{z}, 5, v{a}
    v_lshl_add_u32 v{vTG}, v{c}, 3, v{vTG}
    v_lshlrev_b32 v{z}, 1, v{z}
    v_xor_b32 v{z}, v{z}, v{c}
    v_lshl_add_u32 v{vTQ}, v{z}, 4, v{a}
    v_xor_b32 v{vTQ+1}, 64, v{vTQ}
    v_add_u32 v{vTQ+2}, 49152, v{vTQ}
    v_add_u32 v{vTQ+3}, 49152, v{vTQ+1}""")
    for n in range(1, 4):
        b(f"v_xor_b32 v{vTG+n}, {32*n}, v{vTG}")
    for n in range(4):
        b(f"v_add_u32 v{vTG+4+n}, 49152, v{vTG+n}")
    b(f"v_lshlrev_b32 v{a}, 8, v{g}\nv_add_u32 v{a}, s{sMK}, v{a}")
    for i in range(4):
        b(f"""v_add_u32 v{z}, {4*i}, v{g}
        v_xor_b32 v{z}, v{z}, v{key}
        v_lshl_add_u32 v{vDK+i}, v{z}, 4, v{a}""")
    for i in range(2):
        b(f"""v_add_u32 v{z}, {4*i}, v{g}
        v_lshlrev_b32 v{z}, 1, v{z}
        v_xor_b32 v{z}, v{z}, v{key}
        v_lshl_add_u32 v{vDV+i}, v{z}, 4, v{a}""")
    b(f"v_lshlrev_b32 v{a}, 8, v{key}")
    for kk in range(4):
        b(f"""v_add_u32 v{z}, {4*kk}, v{g}
        v_xor_b32 v{z}, v{z}, v{key}
        v_lshl_add_u32 v{vRK+kk}, v{z}, 4, v{a}""")
    b(f"""v_lshlrev_b32 v{a}, 8, v{row}
    v_lshl_add_u32 v{a}, v{c}, 3, v{a}
    v_add_u32 v{a}, {L_V}, v{a}
    v_and_b32 v{z}, 7, v{row}
    v_lshl_add_u32 v{vRV}, v{z}, 5, v{a}""")
    for dt in range(1, 8):
        b(f"v_xor_b32 v{vRV+dt}, {32*dt}, v{vRV}")
    b(f"""
    v_mov_b32 v{a}, {L_FLAG}
    v_mov_b32 v{z}, 0
    ds_write_b32 v{a}, v{z}""")


PREFETCH = [60, 440, 880, 1320, 1560]
PASSES = [("g", 4, 0), ("u", 4, 0), ("g", 4, 1), ("u", 4, 1), ("T", 2, 0), ("Q", 4, 0), ("Q", 4, 1)]


def w_dma(cidx):
    p, c = divmod(cidx, 3)
    kind, _, i2 = PASSES[p]
    out = []
    for s in range(2):
        if kind == "T":
            if s == 0:
                out.append(f"s_add_u32 s{sWa}, s{sColT}, {c*192*2*F}")
            out.append(f"s_add_u32 m0, s{sMW2}, {(cidx%RING)*24576 + s*12288}")
            r, vo = (WG, WU)[s], vDT
        else:
            pitch = 8192 if kind == "Q" else 2 * F
            out.append(f"s_add_u32 s{sWa}, s{sColG}, {(c*192 + s*24)*pitch + i2*128}")
            out.append(f"s_add_u32 m0, s{sMW}, {(cidx%RING)*24576 + s*3072}")
            r, vo = {"g": (WG, vDG), "u": (WU, vDG), "Q": (WQ, vDQ)}[kind]
        for i in range(3):
            out.append(f"buffer_load_dwordx4 v{vo+i}, s[{r}:{r+3}], s{sWa} offen offset:{i*1024} lds")
    return out


def x_loads(ks):
    out = [f"buffer_load_dwordx4 {xreg(ks, qb)}, v{vXA + qb//2}, s[{WS}:{WS+3}], s{sX} offen offset:{(qb&1)*1024}"
           for qb in range(4)]
    out.append(f"s_add_u32 s{sX}, s{sX}, 4096")
    return out


def kv_dma(which, slot):
    if which == "K":
        out = [f"s_add_u32 m0, s{sMK}, {L_K + slot*16384}"]
        out += [f"buffer_load_dwordx4 v{vDK+t}, s[{SK}:{SK+3}], s{sKo} offen offset:{t*1024} lds" for t in range(4)]
        out.append(f"s_add_u32 s{sKo}, s{sKo}, 16384")
    else:
        out = [f"s_add_u32 m0, s{sMV}, {vslot(slot)}"]
        out += [f"buffer_load_dwordx4 v{vDV+(t&1)}, s[{SV}:{SV+3}], s{sVo} offen offset:{t*1024} lds" for t in range(4)]
        out.append(f"s_add_u32 s{sVo}, s{sVo}, 16384")
    return out


def k_read(unit, kb, kk):
    return f"ds_read_b128 {r4('a', aK + (kb%2)*16 + kk*4)}, v{vRK+kk} offset:{L_K + (unit%4)*16384 + kb*4096}"


def v_read(unit, dt, m, half):
    r = aV + ((dt // 2) % 2) * 16 + ((dt % 2) * 2 + m) * 4 + half * 2
    return f"ds_read_b64_tr_b16 a[{r}:{r+1}], v{vRV+dt} offset:{vslot(unit%4) + m*8192 + half*4096}"


def sigmoid(regs):
    out = []
    for op in (f"v_mul_f32 v{{0}}, s{sC}, v{{0}}", "v_exp_f32 v{0}, v{0}", "v_add_f32 v{0}, 1.0, v{0}", "v_rcp_f32 v{0}, v{0}"):
        out += [op.format(r) for r in regs]
    return out


def h_store(reg, qb, sdst):
    return f"buffer_store_dwordx4 {r4('v', reg)}, v{vXA + qb//2}, s[{WS}:{WS+3}], s{sdst} offen offset:{(qb&1)*1024}"


def q_epilogue(acc, half):
    out = []
    for qb in range(4):
        base = acc + qb * 16
        for e in range(16):
            out.append(f"v_mul_f32 v{base+e}, s{sC}, v{base+e}")
        for e in range(8):
            out.append(f"v_cvt_pk_bf16_f32 v{vQ+qb*16+half*8+e}, v{base+2*e}, v{base+2*e+1}")
    return out


def phase1(pro, b, stamps=False, knock=None):
    pro.add([Ins(t, "W0") for t in w_dma(0)])
    for ks in range(6):
        pro.add(x_loads(ks))
        if ks == 2:
            setup2(pro)
    pro(f"s_mov_b32 s{sC}, {f2u(-LOG2E)}\ns_mov_b32 s{sKo}, 0\ns_mov_b32 s{sVo}, 0")
    mf, groups = [], []
    for p, (kind, nqb, _) in enumerate(PASSES):
        acc = ACC[p % 2]
        for c in range(3):
            for kg in range(2):
                for t in range(4):
                    gi = len(groups)
                    groups.append(dict(p=p, c=c, kg=kg, t=t, start=len(mf), kind=kind))
                    for qb in range(nqb):
                        d = r4("v", acc + qb * 16 + t * 4)
                        for k in range(3):
                            ks = c * 6 + kg * 3 + k
                            a = r4("v", vAF + (gi % 2) * 12 + k * 4)
                            mf.append(f"{MF} {d}, {a}, {xreg(ks, qb)}, {'0' if ks == 0 else d}")
    N = len(mf)
    pstart = [next(g["start"] for g in groups if g["p"] == p) for p in range(7)] + [N]

    def reads(gi):
        g = groups[gi]
        out = []
        slot = (g["p"] * 3 + g["c"]) % RING
        hi = slot // 2
        for k in range(3):
            for half in range(2):
                off = 24576 * (slot % 2)
                kh = (g["kg"] * 3 + k) * 2 + half
                if g["kind"] == "T":
                    off += (g["t"] // 2) * 12288 + kh * 1024
                    va = vTT + 2 * hi + g["t"] % 2
                elif g["kind"] == "Q":
                    off += kh * 2048 + 8 * (g["t"] % 2)
                    va = vTQ + 2 * hi + g["t"] // 2
                else:
                    off += kh * 2048
                    va = vTG + 4 * hi + g["t"]
                r = vAF + (gi % 2) * 12 + k * 4 + half * 2
                out.append(f"ds_read_b64_tr_b16 v[{r}:{r+1}], v{va} offset:{off}")
        return out

    pro("WAITVM W0\ns_waitcnt lgkmcnt(0)\ns_barrier")
    if stamps: stamp(pro, 1)
    pro.add(reads(0))
    items, pinned, bar = [], {}, {-2: -1, -1: 96}
    for gi, g in enumerate(groups):
        if gi % 8 == 7:
            cidx = gi // 8
            gp = g["start"] - 1
            bar[cidx] = gp
            tags = f"W{cidx+1}" if cidx < 20 else "K0"
            pinned[gp] = [Ins("WAITVM " + tags), Ins("s_waitcnt lgkmcnt(0)"), Ins("s_barrier")]
    for gi, g in enumerate(groups[:-1]):
        st, nx = g["start"], groups[gi + 1]["start"]
        for k, t in enumerate(reads(gi + 1)):
            rdy = st - 1 + (k if nx - st == 12 else k // 2)
            items.append(Item(t, rdy, rdy + 2))

    def paced(ts, start, step, tag=None, space=5, slack=6):
        pos = start
        for t in ts:
            vm = t.startswith("buffer") or t.startswith("global")
            items.append(Item(t, pos - (0 if vm else 3), pos + slack, tag=tag, prio=pos - 20, space=space))
            if vm:
                pos += step
        return pos

    for c in (1, 2):
        pos = paced(w_dma(c), (c - 1) * 96 + 1, 3, tag=f"W{c}", space=3)
        for ks in range(6 * c, 6 * c + 6):
            pos = paced(x_loads(ks), pos, 3, space=3)
    pos = 192
    for tgt in range(3, 21):
        cidx = tgt - RING
        tail = PASSES[tgt // 3][0] == "T"
        start = max(bar[cidx] + 4 if cidx >= 0 else 0, pos)
        step = 6 if tgt < 7 else min((bar[cidx + 1] - bar[cidx] - 4) // 6, 10 if tail else 8)
        pos = paced(w_dma(tgt), start, step, tag=f"W{tgt}", space=min(step, 9 if tail else 5))
    for i, (which, slot) in enumerate((("K", 0), ("V", 0), ("K", 1))):
        pos = paced(kv_dma(which, slot), max(pos, bar[17] - 40 + 40 * i), 8, tag=f"{which}{slot}")
    if PREFETCH:
        for i, g in enumerate(PREFETCH):
            items.append(Item(f"v_add_co_u32 v{vPC}, vcc, 0x2000, v{vPC}", g - 20, g - 4))
            items.append(Item(f"v_addc_co_u32 v{vPC+1}, vcc, 0, v{vPC+1}, vcc", g - 18, g - 2))
            paced([f"global_load_dword v{vPD}, v[{vPC}:{vPC+1}], off"], g, 1)

    def spread(ts, st, en, space=5):
        for k, t in enumerate(ts):
            items.append(Item(t, st, en, prio=st + 16 + k * (en - st - 26) // len(ts), space=space))

    for p in range(6):
        kind, nqb, i2 = PASSES[p]
        st, en = pstart[p + 1], pstart[p + 2]
        acc = ACC[p % 2]
        if kind == "g":
            lo, hi = st - 30, en - 6
            for t in range(4):
                for q2 in range(2):
                    ts = sigmoid([acc + qb * 16 + t * 4 + e for qb in (2 * q2, 2 * q2 + 1) for e in range(4)])
                    j = t * 2 + q2
                    for k, x in enumerate(ts):
                        items.append(Item(x, st - 48 + t * 12 + q2 * 6 + 10, None,
                                          prio=lo + 16 + (j * 32 + k) * (hi - lo - 16) // 256))
        elif kind == "u":
            glen = 3 * PASSES[p + 1][1]
            for t in range(4):
                for qb in range(4):
                    done = st - 48 + t * 12 + qb * 3 + 2
                    need = st + t * glen + qb * 3 - 2 if qb < PASSES[p + 1][1] else en - 30
                    for e in range(4):
                        r = qb * 16 + t * 4 + e
                        items.append(Item(f"v_mul_f32 v{acc+r}, v{ACC[0]+r}, v{acc+r}", done + 5, need))
            ts = [f"s_add_u32 s{sH}, s{sHb}, {i2*8192}", f"s_add_u32 s{sH2}, s{sHb}, {i2*8192+4096}"]
            dst = [acc + qb * 16 for qb in range(4)] if i2 == 0 else [ACC[0] + 32 + qb * 8 for qb in range(4)]
            for qb in range(4):
                for e in range(8):
                    ts.append(f"v_cvt_pk_bf16_f32 v{dst[qb]+e}, v{acc+qb*16+2*e}, v{acc+qb*16+2*e+1}")
            spread(ts, st + 6, en - 4)
            last = en - 6 if i2 == 0 else pstart[p + 3] - 60
            first = st + (40 if i2 == 0 else 70)
            for k in range(8):
                g = first + k * (last - first) // 8
                items.append(Item(h_store(dst[k // 2] + 4 * (k % 2), k // 2, (sH, sH2)[k % 2]), g, last, prio=g))
        elif kind == "T":
            ts = []
            for qb in range(2):
                base = acc + qb * 16
                ts += sigmoid(range(base, base + 8))
                ts += [f"v_mul_f32 v{base+e}, v{base+e}, v{base+8+e}" for e in range(8)]
                ts += [f"v_cvt_pk_bf16_f32 v{base+e}, v{base+2*e}, v{base+2*e+1}" for e in range(4)]
            spread(ts, st + 4, en - 50)
            for qb in range(2):
                items.append(Item(h_store(acc + qb * 16, qb, sHt), en - 50 + 30 * qb, en - 4))
        else:
            spread([f"s_mov_b32 s{sC}, {f2u(QSCALE)}"] + q_epilogue(acc, 0), st + 4, en - 4)
    free9 = next(g["start"] for g in groups if g["p"] == 6 and g["c"] == 2)
    for r in range(144):
        ks = r // 16
        st = next(g["start"] for g in groups if g["p"] == 6 and g["c"] * 6 + g["kg"] * 3 > ks)
        items.append(Item(f"v_accvgpr_write_b32 a{r}, 0", st + 2, N - 6))
    ones = [f"v_and_b32 v{vTMP}, 3, v0", f"v_cmp_eq_u32 vcc, 0, v{vTMP}", f"v_mov_b32 v{vTMP+1}, 0x3f803f80",
            f"v_mov_b32 v{vTMP+2}, 0", f"v_cndmask_b32 v{vTMP}, v{vTMP+2}, v{vTMP+1}, vcc"]
    ones += [f"v_accvgpr_write_b32 a{aONE+i}, v{vTMP}" for i in range(4)]
    for k, t in enumerate(ones):
        items.append(Item(t, free9 + 2 + 2 * k, N - 6))
    for kk in range(4):
        items.append(Item(k_read(0, 0, kk), bar[20], N - 2))
    gaps = schedule(N, items, pinned)
    if stamps:
        t = Block()
        stamp(t, 2)
        gaps[pstart[1] - 1] = gaps[pstart[1] - 1] + t.ins
        for p in range(2, 7):
            t = Block()
            stamp(t, 7 + p)
            gaps[pstart[p] - 1] = gaps[pstart[p] - 1] + t.ins
    if knock:
        import re
        for gi in range(pstart[1], N):
            gaps[gi] = [x for x in gaps[gi] if not re.search(knock, (x.ins if isinstance(x, Item) else x).text)]
    weave(b, mf, gaps)
    b.add(q_epilogue(ACC[0], 1))


def first_max(b):
    for qb in range(4):
        d = r4("v", vS + qb * 4)
        for kk in range(4):
            b(f"{MF} {d}, {r4('a', aK + kk*4)}, {r4('v', vQ + qb*16 + kk*4)}, {'0' if kk == 0 else d}")
    for qb in range(4):
        s = vS + qb * 4
        b(f"v_max3_f32 v{vTMP+qb}, v{s}, v{s+1}, v{s+2}\nv_max_f32 v{vTMP+qb}, v{vTMP+qb}, v{s+3}")


def finish_max(b):
    for op in ("v_permlane32_swap_b32", "v_permlane16_swap_b32"):
        for qb in range(4):
            b(f"v_mov_b32 v{vTMP+4+qb}, v{vTMP+qb}")
        for qb in range(4):
            b(f"{op} v{vTMP+qb}, v{vTMP+4+qb}")
        for qb in range(4):
            b(f"v_max_f32 v{vTMP+qb}, v{vTMP+qb}, v{vTMP+4+qb}")
    for qb in range(4):
        for i in range(4):
            b(f"v_sub_f32 v{vNEG+qb*4+i}, 0, v{vTMP+qb}")


class Attn:
    def __init__(self, sumq=(0, 1, 2, 3), lag=7, barback=16):
        self.sumq = sumq
        self.mk = []
        self.qk0, self.pv0 = [], []
        for i in range(4):
            self.qk0.append(len(self.mk))
            self.mk += [("qk", i, qb, kk) for qb in range(4) for kk in range(4)]
            self.pv0.append(len(self.mk))
            self.mk += [("pv", dt, qb, m) for dt in (2 * i, 2 * i + 1) for qb in range(4) for m in range(2)]
            if i in sumq:
                self.mk += [("sum", 0, i, m) for m in range(2)]
        self.G = G = len(self.mk)
        self.bar = G - barback
        NS = 6
        items, pinned = [], {}
        for u in range(NS):
            o = u * G
            pinned[o + self.bar] = [Ins("s_waitcnt vmcnt(8)"), Ins("s_barrier")]
            pinned[o + G - 1] = [Ins("s_cmp_eq_u32 s0, 0"), Ins("s_cbranch_scc1 x")]
            n = u + 1
            for kb in range(4):
                q0 = o + self.qk0[kb]
                q1 = o + (self.qk0[kb + 1] if kb < 3 else G)
                for e in range(16):
                    qb, t = divmod(e, 4)
                    g = q0 + lag + e * (q1 - q0) // 16
                    while g in pinned or (g % G) in (self.bar, G - 1):
                        g += 1
                    items.append(self.item(("exp", n, kb, qb, t), g, g))
                    if qb not in sumq:
                        items.append(self.item(("add", n, kb, qb, t), g + 1, g + 12))
                    if t % 2 == 1:
                        items.append(self.item(("cvt", n, kb, qb, t), g + 1, g + 5))
            for kb in range(4):
                use = o + self.qk0[kb]
                rdy = (o - G + self.bar) if kb < 2 else (o + self.qk0[kb - 2] + 16)
                rdy = max(rdy, use - 30)
                for kk in range(4):
                    items.append(self.item(("kr", n, kb, kk, 0), max(rdy, 0), max(use - 8 + kk, 0)))
            for dt in range(8):
                use = o + self.pv0[dt // 2] + (dt % 2) * 8
                rdy = (o - G + self.bar) if dt < 4 else (o + self.pv0[dt // 2 - 2] + 16)
                if dt in (2, 3):
                    rdy = max(rdy, o)
                rdy = max(rdy, use - 34)
                for m in range(2):
                    for half in range(2):
                        items.append(self.item(("vr", u, dt, m, half), max(rdy, 0), max(use - 8 + m, 0)))
            for wi, which in enumerate("KV"):
                for k in range(6):
                    pos = o + self.bar + 2 + (wi * 4 + min(max(k - 1, 0), 3)) * (G // 8)
                    pos += -1 if k == 0 else 0
                    items.append(self.item(("dma", u + 4 - wi, which, k, 0), pos, pos + 14))
        gaps = schedule(NS * G, items, pinned)

        def pat(u):
            return [[(it.key[0], it.key[1] - u) + it.key[2:] for it in gaps[u * G + g] if isinstance(it, Item)]
                    for g in range(G)]
        assert pat(3) == pat(4), "schedule is not periodic"
        self.pat = pat(3)

    def item(self, key, ready, deadline):
        return Item(self.text(key), ready, deadline, key=key)

    def text(self, key):
        k, n = key[0], key[1]
        if k in ("exp", "add", "cvt"):
            kb, qb, t = key[2:]
            s = vS + (kb % 2) * 16 + qb * 4 + t
            if k == "exp":
                return f"v_exp_f32 v{s}, v{s}"
            if k == "add":
                return f"v_add_f32 v{vLS+qb}, v{vLS+qb}, v{s}"
            p = vP + (n % 2) * 32 + qb * 8 + (kb // 2) * 4 + (kb % 2) * 2 + t // 2
            return f"v_cvt_pk_bf16_f32 v{p}, v{s-1}, v{s}"
        if k == "kr":
            return k_read(n, key[2], key[3])
        if k == "vr":
            return v_read(n, *key[2:])
        return kv_dma(key[2], n % 4)[key[3]]

    def mfma(self, u, key):
        k, i, qb, z = key
        if k == "qk":
            d = r4("v", vS + (i % 2) * 16 + qb * 4)
            c = r4("v", vNEG + qb * 4) if z == 0 else d
            return f"{MF} {d}, {r4('a', aK + (i%2)*16 + z*4)}, {r4('v', vQ + qb*16 + z*4)}, {c}"
        p = r4("v", vP + (u % 2) * 32 + qb * 8 + z * 4)
        if k == "pv":
            d = r4("a", aO + (i * 4 + qb) * 4)
            return f"{MF} {d}, {r4('a', aV + ((i//2)%2)*16 + ((i%2)*2 + z)*4)}, {p}, {d}"
        d = r4("a", aL + qb * 4)
        return f"{MF} {d}, {r4('a', aONE)}, {p}, {d}"

    def valid(self, key, n, last):
        k = key[0]
        if k == "dma":
            return n >= (2 if key[2] == "K" else 1) and not last
        if k == "kr" and n == 0 and key[2] == 0:
            return False
        return 0 <= n <= 31

    def place(self, extras):
        out, g = {}, 0
        for lo, text, tag in extras:
            ins = Ins(text, tag)
            g = max(g, lo)
            while True:
                used = [Ins(self.text((k[0], 4 + k[1]) + k[2:])) for k in self.pat[g]] + out.get(g, [])
                busy = sum(cost(i) for i in used if i.kind not in ("salu", "pseudo"))
                near = any(k[0] == "dma" and 1 <= k[3] <= 4 for d in (-2, -1, 1, 2) for k in self.pat[(g + d) % self.G])
                if g in (self.bar, self.G - 1):
                    ok = False
                elif ins.kind in ("salu", "pseudo"):
                    ok = not any(i.kind in ("salu", "vmem", "pseudo") for i in used)
                elif ins.kind == "vmem":
                    ok = not used and not near
                else:
                    ok = busy <= 4
                if ok:
                    break
                g += 1
            out.setdefault(g, []).append(ins)
            g += 4 if ins.kind == "vmem" else 1
        return out

    def wt_extras(self, u):
        kend = next(g for g in range(self.G) if ("dma", 2, "V", 4, 0) in self.pat[g])
        vset = next(g for g in range(self.G) if ("dma", 4, "K", 0, 0) in self.pat[g])
        if u % 4 == 0:
            ex = [(kend + 1, f"s_mov_b32 m0, s{sMT}", None)]
            ex += [(0, f"buffer_load_dwordx4 v{vTL+i}, s[{WT}:{WT+3}], s{sTs} offen offset:{i*1024} lds", "WT") for i in range(2)]
            out = self.place(ex + [(0, f"s_add_u32 s{sTs}, s{sTs}, s{sTstep}", None)])
            assert max(g for g, l in out.items() if any(i.kind == "vmem" for i in l)) < vset
            return out
        if u % 4 == 2:
            ex = [(40, "WAITVM WT", None)]
            ex += [(0, f"ds_read_b64_tr_b16 a[{aT+4*n+2*h}:{aT+4*n+2*h+1}], v{vTR+n} offset:{h*1024}", None)
                   for n in range(2) for h in range(2)]
            ex += [(76 + 20 * n, f"buffer_store_dwordx4 {r4('a', aT+4*n)}, v{vL16}, s[{WD}:{WD+3}], s{sTd} offen offset:{n*1024}", None)
                   for n in range(2)]
            return self.place(ex + [(0, f"s_add_u32 s{sTd}, s{sTd}, s{sTstep}", None)])
        return {}

    def slot(self, b, u, tail=None):
        last = u == 31
        extra = self.wt_extras(u) if 0 <= u < 31 else {}
        for g in range(self.G):
            mk = self.mk[g]
            unit = u + 1 if mk[0] == "qk" else u
            if 0 <= unit <= 31:
                b(self.mfma(u, mk))
            if g == self.bar and u >= -1 and not last:
                b(f"WAITVM K{(u+2)%4} V{(u+1)%4}\ns_barrier")
            if g == self.G - 1 and tail:
                pre, post = tail
                b(pre)
            if u == -2 and g < self.bar:
                continue
            here = list(extra.get(g, []))
            for key in self.pat[g]:
                n = u + key[1]
                if self.valid(key, n, last):
                    full = (key[0], n) + key[2:]
                    here.append(Ins(self.text(full), f"{key[2]}{n%4}" if key[0] == "dma" else None))
            here.sort(key=lambda i: ORDER[i.kind])
            assert g != self.G - 1 or not any(i.kind == "salu" for i in here)
            b.add(here)
        if tail:
            b(tail[1])


def o_epilogue(b, sumq):
    for qb in range(4):
        if qb in sumq:
            b(f"v_accvgpr_read_b32 v{vLS+qb}, a{aL+qb*4}")
    rest = [qb for qb in range(4) if qb not in sumq]
    for op in ("v_permlane32_swap_b32", "v_permlane16_swap_b32"):
        for qb in rest:
            b(f"v_mov_b32 v{vTMP+qb}, v{vLS+qb}")
        for qb in rest:
            b(f"{op} v{vLS+qb}, v{vTMP+qb}")
        for qb in rest:
            b(f"v_add_f32 v{vLS+qb}, v{vLS+qb}, v{vTMP+qb}")
    for qb in range(4):
        b(f"v_rcp_f32 v{vLS+4+2*qb}, v{vLS+qb}")
    for qb in range(4):
        b(f"v_mov_b32 v{vLS+5+2*qb}, v{vLS+4+2*qb}")
    b(f"s_mov_b32 s{sT0}, s{sO}")
    n = 0
    for p in range(4):
        for qb in range(4):
            t = vP + (n % 4) * 16
            n += 1
            for e in range(8):
                b(f"v_accvgpr_read_b32 v{t+e}, a{aO + ((2*p + e//4)*4 + qb)*4 + e%4}")
            for e in range(4):
                b(f"v_pk_mul_f32 v[{t+2*e}:{t+2*e+1}], v[{t+2*e}:{t+2*e+1}], v[{vLS+4+2*qb}:{vLS+5+2*qb}]")
            for e in range(4):
                b(f"v_cvt_pk_bf16_f32 v{t+8+e}, v{t+2*e}, v{t+2*e+1}")
            vx = vXA if qb < 2 else vXB
            b(f"buffer_store_dwordx4 {r4('v', t+8)}, v{vx}, s[{WS}:{WS+3}], s{sT0} offen offset:{(qb&1)*1024}")
        if p < 3:
            b(f"s_add_u32 s{sT0}, s{sT0}, 4096")


SAFE_L = 2.0 ** 40


def stamp(b, n):
    b(f"""s_memtime s[84:85]
    s_memrealtime s[86:87]
    s_waitcnt lgkmcnt(0)""")
    if n == 0:
        b("s_mov_b32 s88, s84\ns_mov_b32 s89, s86\nv_mov_b32 v51, 0")
    b(f"""s_sub_u32 s84, s84, s88
    s_sub_u32 s86, s86, s89
    v_writelane_b32 v51, s84, {2*n}
    v_writelane_b32 v51, s86, {2*n+1}""")


def stamp_flush(b, pre='att'):
    b(f"""s_lshl_b32 s84, s2, 8
    s_add_u32 s84, s84, {WS_DBG:#x}
    v_lshlrev_b32 v52, 2, v0
    v_cmp_gt_u32 vcc, 64, v0
    s_and_saveexec_b64 s[86:87], vcc
    s_cbranch_execz {pre}_nostamp
    buffer_store_dword v51, v52, s[{WS}:{WS+3}], s84 offen
    {pre}_nostamp:
    s_mov_b64 exec, -1""")


def gen_att(sumq=(0, 1, 2, 3), lag=7, barback=16, verbose=False, force_retry=False, stamps=False, knock=None, knock2=None):
    A = Attn(sumq, lag, barback)
    pro, p1, fm, ap, lp, lp2, fin, rt, rl, rt2, end = (Block(n) for n in
        ("pro", "p1", "fmax", "apro", "loopabc", "loopd", "final", "retry", "retryloop", "retry2", "end"))
    setup(pro)
    if stamps: stamp(pro, 0)
    phase1(pro, p1, stamps, knock)
    if stamps: stamp(p1, 3)
    if knock or knock2: p1(f"s_mov_b32 s{sRetry}, 1")
    first_max(fm)
    ap("att_restart:")
    finish_max(ap)
    for qb in range(4):
        if qb not in sumq:
            ap(f"v_mov_b32 v{vLS+qb}, 0")
    ap(f"s_mov_b32 s{sCnt}, 7")
    A.slot(ap, -2)
    A.slot(ap, -1)
    if stamps: stamp(ap, 4)
    lp(".p2align 6\natt_loop:")
    A.slot(lp, 0)
    A.slot(lp, 1)
    A.slot(lp, 2, (f"s_cmp_eq_u32 s{sCnt}, 0", "s_cbranch_scc1 att_final"))
    A.slot(lp2, 3, (f"s_sub_u32 s{sCnt}, s{sCnt}, 1", "s_branch att_loop"))
    fin("att_final:")
    if stamps: stamp(fin, 5)
    A.slot(fin, 31)
    if stamps: stamp(fin, 6)
    o_epilogue(fin, sumq)
    if stamps:
        stamp(fin, 7)
        fin("s_waitcnt vmcnt(0)")
        stamp(fin, 8)
        stamp_flush(fin)
    fin(f"""v_add_f32 v{vTMP+1}, v{vLS}, v{vLS+1}
    v_add_f32 v{vTMP+2}, v{vLS+2}, v{vLS+3}
    v_add_f32 v{vTMP+1}, v{vTMP+1}, v{vTMP+2}
    v_mov_b32 v{vTMP+2}, {f2u(0.0 if force_retry else SAFE_L)}
    v_cmp_nge_f32 vcc, v{vTMP+2}, v{vTMP+1}
    v_mov_b32 v{vTMP+3}, {L_FLAG}
    v_mov_b32 v{vTMP+4}, 1
    s_and_saveexec_b64 s[44:45], vcc
    s_cbranch_execz att_noflag
    ds_write_b32 v{vTMP+3}, v{vTMP+4}
    att_noflag:
    s_mov_b64 exec, -1
    s_waitcnt lgkmcnt(0)
    s_barrier
    ds_read_b32 v{vTMP+4}, v{vTMP+3}
    s_waitcnt lgkmcnt(0)
    v_readfirstlane_b32 s{sT0}, v{vTMP+4}
    s_cmp_gt_u32 s{sT0}, s{sRetry}
    s_cbranch_scc0 att_end""")
    rt(f"""s_mov_b32 s{sRetry}, 1
    s_mov_b32 s{sKo}, 0
    s_mov_b32 s{sCnt}, 32
    s_waitcnt vmcnt(0)""")
    for qb in range(4):
        rt(f"v_mov_b32 v{vTMP+qb}, 0xff800000")
    rl("att_maxloop:\ns_barrier")
    rl.add(kv_dma("K", 0))
    rl("s_waitcnt vmcnt(0)\ns_barrier")
    for kb in range(4):
        for kk in range(4):
            rl(k_read(0, kb, kk))
        for qb in range(4):
            d = r4("v", vS + qb * 4)
            for kk in range(4):
                rl(f"{MF} {d}, {r4('a', aK + (kb%2)*16 + kk*4)}, {r4('v', vQ + qb*16 + kk*4)}, {'0' if kk == 0 else d}")
        for qb in range(4):
            s = vS + qb * 4
            rl(f"v_max3_f32 v{vTMP+qb}, v{vTMP+qb}, v{s}, v{s+1}\nv_max3_f32 v{vTMP+qb}, v{vTMP+qb}, v{s+2}, v{s+3}")
    rl(f"s_sub_u32 s{sCnt}, s{sCnt}, 1\ns_cmp_lg_u32 s{sCnt}, 0\ns_cbranch_scc1 att_maxloop")
    rt2(f"s_barrier\ns_mov_b32 s{sKo}, 0\ns_mov_b32 s{sVo}, 0")
    for which, slot in (("K", 0), ("V", 0), ("K", 1)):
        rt2.add([Ins(t, f"{which}{slot}") for t in kv_dma(which, slot)])
    for r in range(144):
        rt2(f"v_accvgpr_write_b32 a{r}, 0")
    rt2("s_waitcnt vmcnt(0)\ns_barrier")
    for kk in range(4):
        rt2(k_read(0, 0, kk))
    rt2("s_waitcnt lgkmcnt(0)\ns_branch att_restart")
    end("att_end:\ns_endpgm")
    if knock2:
        import re
        for blk in (lp, lp2):
            blk.ins = [x for x in blk.ins if not re.search(knock2, x.text)]
    main = [pro, p1, fm, ap, lp, lp2, lp, lp2, lp, fin]
    traces = [main + [end], main + [rt, rl, rl, rt2, ap, lp, lp2, lp, fin, end]]
    insert_waits(traces)
    n = pad_hazards(traces, verbose)
    if verbose:
        print("pads", n)
        for blk in (pro, p1, fm, ap, lp, lp2, fin):
            c, nm, over = estimate(blk)
            print(blk.name, "est cycles", c, "mfma", nm, "ideal", nm * 16, "ninstr", len(blk.ins), "over", len(over), sum(o[1] for o in over))
            if blk is p1: print([o[0] for o in over])
    text = "".join(x.text() for x in (pro, p1, fm, ap, lp, lp2, fin, rt, rl, rt2, end))
    return dict(name="att_kernel", grid=256, block=256, lds=LDS_BYTES, vgpr=512, acc=256, sgpr=96, text=text)


if __name__ == "__main__":
    from build import assemble
    from k_ln import gen_ln
    assemble([gen_ln(), gen_att(verbose=True)], "a.s")
    assemble([gen_ln(), gen_att(stamps=True)], "a_st.s")
```

```python
from isa import *
from sched import *
from common import *
from k_ln import srd
from k_att import MF, LOG2E, f2u, r4, stamp, stamp_flush

WS, SX, SO = 4, 8, 12
sW, sRole, sA0, sA1, sW0, sW1, sCnt, sT0, sT1, sT2, sFlag, sOwn, sOth, sXo, sC, sSpin = range(20, 36)
vA, vW, vLW, vLR, vXO, vZ, vF, vPC, vPD = 1, 5, 8, 11, 12, 13, 14, 16, 18
vX = 20
vACC = 112
L_FLAG = 110592
LDS_BYTES = 110592 + 256
SPIN = 24


def frag(buf, n):
    r = buf * 104 + n * 4
    return r4("a", r) if r < 256 else r4("v", 56 + r - 256)


def xf(buf, m, b):
    return frag(buf, m * 4 + b)


def wf(buf, m, t):
    return frag(buf, 8 + t * 2 + m)


def acc(t, b):
    return vACC + (b * 9 + t) * 4


def loads(buf):
    def lx(m, b):
        return f"buffer_load_dwordx4 {xf(buf, m, b)}, v{vA+b}, s[{WS}:{WS+3}], s{sA0+m} offen"

    def lw(m, t):
        return f"buffer_load_dwordx4 {wf(buf, m, t)}, v{vW+t//4}, s[{WS}:{WS+3}], s{sW0+m} offen offset:{t%4*1024}"
    out = [lw(0, 0), lx(0, 0), lw(1, 0), lx(1, 0)]
    for b in range(1, 4):
        out += [lx(0, b), lx(1, b)]
    out += [f"s_add_u32 s{sA0}, s{sA0}, 32768", f"s_add_u32 s{sA1}, s{sA1}, 32768"]
    for t in range(1, 9):
        out += [lw(0, t), lw(1, t)]
    out += [f"s_add_u32 s{sW0}, s{sW0}, {8*36864}", f"s_add_u32 s{sW1}, s{sW1}, {8*36864}"]
    return out


def stage(b, buf, prefetch, extra=None, tail=None):
    mf = []
    for t in range(9):
        for q in range(4):
            for m in range(2):
                d = r4("v", acc(t, q))
                mf.append(f"{MF} {d}, {wf(buf, m, t)}, {xf(buf, m, q)}, {d}")
    items = []
    if prefetch:
        k = 0
        for x in loads((buf + 2) % 3):
            g = k * 68 // 26
            items.append(Item(x, g, g + 1, space=1))
            k += x.startswith("buffer")
    items += extra or []
    pinned = {}
    if tail:
        pinned[71] = [Ins(x) for x in tail]
    gaps = schedule(72, items, pinned)
    assert not tail or (len(gaps[71]) == len(tail) and not gaps[72])
    weave(b, mf, gaps)


def gen_out(verbose=False, stamps=False):
    names = ("pro", "py", "ps", "l0", "l1", "l2", "t1", "t2", "poll", "red", "fast", "red2", "silu", "dec", "pub", "pub2",
             "late", "fin", "end")
    pro, py, ps, l0, l1, l2, t1, t2, poll, red, fast, red2, silu, dec, pub, pub2, late, fin, end = (Block(n) for n in names)
    t = 40
    pro(f"""out_kernel:
    s_cmp_ge_u32 s2, 256
    s_cbranch_scc1 out_end
    s_load_dwordx2 s[40:41], s[0:1], {ARG['x']}
    s_load_dwordx2 s[42:43], s[0:1], {ARG['out']}
    s_load_dwordx2 s[44:45], s[0:1], {ARG['ws']}
    s_getpc_b64 s[46:47]
    v_lshlrev_b32 v{t}, 5, v0
    v_mov_b32 v{vPC+1}, s47
    v_add_co_u32 v{vPC}, vcc, s46, v{t}
    v_addc_co_u32 v{vPC+1}, vcc, 0, v{vPC+1}, vcc
    global_load_dword v{vPD}, v[{vPC}:{vPC+1}], off
    v_lshrrev_b32 v{t}, 6, v0
    v_and_b32 v{t+1}, 63, v0
    v_readfirstlane_b32 s{sW}, v{t}
    v_lshlrev_b32 v{vW}, 4, v{t+1}
    v_add_u32 v{vW+1}, 4096, v{vW}
    v_add_u32 v{vW+2}, 8192, v{vW}
    v_lshl_add_u32 v{vA}, v{t}, 10, v{vW}
    v_xor_b32 v{vA+1}, 1024, v{vA}
    v_xor_b32 v{vA+2}, 2048, v{vA}
    v_xor_b32 v{vA+3}, 3072, v{vA}
    s_bfe_u32 s{sRole}, s2, 0x10002
    s_and_b32 s{sT0}, s2, 3
    s_lshl_b32 s{sT0}, s{sT0}, 3
    s_lshr_b32 s{sT1}, s2, 5
    s_add_u32 s{sT0}, s{sT0}, s{sT1}
    s_bfe_u32 s{sT1}, s2, 0x20003
    s_cmp_eq_u32 s{sRole}, 0
    s_cselect_b32 s{sA0}, 8, 9
    s_cselect_b32 s{sA1}, 0, {WS_HF - WS_OF + (1 << 32):#x}
    s_cselect_b32 s{sW0}, 0, 128
    s_mul_i32 s{sA0}, s{sA0}, s{sT0}
    s_lshl_b32 s{sA0}, s{sA0}, 4
    s_lshl_b32 s{sT2}, s{sW}, 1
    s_add_u32 s{sA0}, s{sA0}, s{sT2}
    s_lshl_b32 s{sA0}, s{sA0}, 12
    s_add_u32 s{sA0}, s{sA0}, s{sA1}
    s_add_u32 s{sA0}, s{sA0}, {WS_OF:#x}
    s_add_u32 s{sA1}, s{sA0}, 4096
    s_add_u32 s{sW0}, s{sW0}, s{sT2}
    s_lshl_b32 s{sW0}, s{sW0}, 2
    s_add_u32 s{sW0}, s{sW0}, s{sT1}
    s_mul_i32 s{sW0}, s{sW0}, 9216
    s_add_u32 s{sW0}, s{sW0}, {WS_WT:#x}
    s_add_u32 s{sW1}, s{sW0}, 36864
    s_waitcnt lgkmcnt(0)""")
    srd(pro, WS, 44, WS_BYTES)
    if stamps: stamp(pro, 0)
    pro(f"s_cmp_eq_u32 s{sRole}, 0\ns_cbranch_scc1 out_pro_s")

    def rest(b):
        srd(b, SX, 40, S * D * 2)
        srd(b, SO, 42, S * D * 2)
        b(f"""s_lshl_b32 s{sT2}, s{sT0}, 2
        s_add_u32 s{sT2}, s{sT2}, s{sT1}
        s_lshl_b32 s{sFlag}, s{sT2}, 7
        s_add_u32 s{sFlag}, s{sFlag}, {WS_FLAG:#x}
        s_lshl_b32 s{sT2}, s{sT2}, 3
        s_add_u32 s{sT2}, s{sT2}, s{sW}
        s_lshl_b32 s{sOwn}, s{sRole}, 2
        s_xor_b32 s{sOth}, s{sOwn}, 4
        s_add_u32 s{sOwn}, s{sOwn}, s{sT2}
        s_add_u32 s{sOth}, s{sOth}, s{sT2}
        s_mul_i32 s{sOwn}, s{sOwn}, 9216
        s_mul_i32 s{sOth}, s{sOth}, 9216
        s_add_u32 s{sOwn}, s{sOwn}, {WS_SP:#x}
        s_add_u32 s{sOth}, s{sOth}, {WS_SP:#x}
        s_lshl_b32 s{sXo}, s{sT0}, 2
        s_add_u32 s{sXo}, s{sXo}, s{sW}
        s_mul_i32 s{sXo}, s{sXo}, {16*2*D}
        s_mul_i32 s{sT2}, s{sT1}, 288
        s_add_u32 s{sXo}, s{sXo}, s{sT2}
        s_mul_i32 s{sSpin}, s{sRole}, {SPIN}
        s_mov_b32 s{sC}, {f2u(-LOG2E)}
        v_and_b32 v{t+2}, 15, v0
        v_mul_u32_u24 v{vXO}, {2*D}, v{t+2}
        v_lshrrev_b32 v{t+2}, 4, v{t+1}
        v_lshl_add_u32 v{vXO}, v{t+2}, 3, v{vXO}
        v_mul_u32_u24 v{vLR}, 27648, v{t}
        v_add_u32 v{vLR}, v{vLR}, v{vW}
        v_mov_b32 v{vZ}, 0
        v_mov_b32 v{vF+1}, {L_FLAG}""")
        for q in range(1, 4):
            b(f"""v_xor_b32 v{t+2}, {q}, v{t}
            v_mul_u32_u24 v{t+2}, 27648, v{t+2}
            v_add_u32 v{t+2}, {(q-1)*9216}, v{t+2}
            v_add_u32 v{vLW+q-1}, v{t+2}, v{vW}""")
        for r in range(144):
            b(f"v_mov_b32 v{vACC+r}, 0")

    for blk, first, cnt, entry in ((py, 0, 5, None), (ps, 2, 4, "out_l2")):
        if entry:
            blk("out_pro_s:")
        blk.add(loads(first))
        rest(blk)
        blk.add(loads((first + 1) % 3))
        if stamps: stamp(blk, 1)
        blk(f"s_mov_b32 s{sCnt}, {cnt}")
        blk(f"s_branch {entry or 'out_l0'}")
    l0(".p2align 6\nout_l0:")
    stage(l0, 0, True, tail=[f"s_cmp_eq_u32 s{sCnt}, 0", "s_cbranch_scc1 out_tail"])
    stage(l1, 1, True, tail=[f"s_sub_u32 s{sCnt}, s{sCnt}, 1"])
    l2("out_l2:")
    stage(l2, 2, True, tail=["s_branch out_l0"])
    t1("out_tail:")
    if stamps: stamp(t1, 2)
    ex = [Item(f"buffer_load_dwordx2 v[{vX+2*i}:{vX+2*i+1}], v{vXO}, s[{SX}:{SX+3}], s{sXo} offen offset:{i*32}", 6 * i, 6 * i + 2)
          for i in range(9)]
    stage(t1, 1, False, ex)
    ex = [Item(f"ds_write_b128 v{vLW+q-1}, {r4('v', acc(i, q))} offset:{i*1024}", 8 * i + 2 * q + 6, None)
          for i in range(9) for q in range(1, 4)]
    ex.append(Item(f"buffer_load_dword v{vF}, v{vZ}, s[{WS}:{WS+3}], s{sFlag} offen sc1", 40, 41))
    stage(t2, 2, False, ex)
    if stamps: stamp(t2, 3)
    poll(f"""s_cmp_lg_u32 s{sW}, 0
    s_cbranch_scc1 out_polled
    out_poll:
    s_waitcnt vmcnt(0)
    v_readfirstlane_b32 s{sT0}, v{vF}
    s_cmp_lg_u32 s{sT0}, 0
    s_cbranch_scc1 out_share
    s_cmp_eq_u32 s{sSpin}, 0
    s_cbranch_scc1 out_share
    s_sub_u32 s{sSpin}, s{sSpin}, 1
    buffer_load_dword v{vF}, v{vZ}, s[{WS}:{WS+3}], s{sFlag} offen sc1
    s_branch out_poll
    out_share:
    ds_write_b32 v{vF+1}, v{vF}
    out_polled:
    s_waitcnt vmcnt(0) lgkmcnt(0)
    s_barrier""")
    if stamps: stamp(red, 4)
    red(f"ds_read_b32 v{vF}, v{vF+1}")
    for i in range(9):
        for q in range(1, 4):
            red(f"ds_read_b128 {r4('v', acc(i, q))}, v{vLR} offset:{((q-1)*9+i)*1024}")
            if i == 3 and q == 3:
                red(f"v_readfirstlane_b32 s{sT0}, v{vF}")
    red(f"s_cmp_eq_u32 s{sT0}, 0\ns_cbranch_scc1 out_red2")
    P = 56

    def partner(b):
        for i in range(9):
            b(f"buffer_load_dwordx4 {r4('v', P+4*i)}, v{vW+i//4}, s[{WS}:{WS+3}], s{sOth} offen offset:{i%4*1024} sc1")
    partner(fast)
    red2("out_red2:")
    for i in range(9):
        for q in range(1, 4):
            for e in (0, 2):
                d, s_ = acc(i, 0) + e, acc(i, q) + e
                red2(f"v_pk_add_f32 v[{d}:{d+1}], v[{d}:{d+1}], v[{s_}:{s_+1}]")
    red2(f"s_cmp_eq_u32 s{sRole}, 0\ns_cbranch_scc1 out_decide")
    U = acc(0, 1)
    for r in range(36):
        silu(f"v_mul_f32 v{U+r}, s{sC}, v{vACC+r}")
    for r in range(36):
        silu(f"v_exp_f32 v{U+r}, v{U+r}")
    for r in range(36):
        silu(f"v_add_f32 v{U+r}, 1.0, v{U+r}")
    for r in range(36):
        silu(f"v_rcp_f32 v{U+r}, v{U+r}")
    for r in range(0, 36, 2):
        silu(f"v_pk_mul_f32 v[{vACC+r}:{vACC+r+1}], v[{vACC+r}:{vACC+r+1}], v[{U+r}:{U+r+1}]")
    dec("out_decide:")
    if stamps: stamp(dec, 5)
    dec(f"s_cmp_lg_u32 s{sT0}, 0\ns_cbranch_scc1 out_final")
    for i in range(9):
        pub(f"buffer_store_dwordx4 {r4('v', vACC+4*i)}, v{vW+i//4}, s[{WS}:{WS+3}], s{sOwn} offen offset:{i%4*1024} sc1")
    pub(f"""s_waitcnt vmcnt(0)
    s_barrier
    s_cmp_lg_u32 s{sW}, 0
    s_cbranch_scc1 out_added
    v_mov_b32 v{vF}, 1
    s_mov_b64 exec, 1
    buffer_atomic_add v{vF}, v{vZ}, s[{WS}:{WS+3}], s{sFlag} offen sc0 sc1
    s_waitcnt vmcnt(0)
    ds_write_b32 v{vF+1}, v{vF}
    s_mov_b64 exec, -1""")
    pub2(f"""out_added:
    s_waitcnt lgkmcnt(0)
    s_barrier
    ds_read_b32 v{vF}, v{vF+1}
    s_waitcnt lgkmcnt(0)
    v_readfirstlane_b32 s{sT0}, v{vF}
    s_cmp_eq_u32 s{sT0}, 0
    s_cbranch_scc1 {'out_stamp' if stamps else 'out_end'}""")
    partner(late)
    fin("out_final:")
    for i in range(18):
        fin(f"v_lshlrev_b32 v{U+2*i}, 16, v{vX+i}\nv_and_b32 v{U+2*i+1}, 0xffff0000, v{vX+i}")
    for i in range(9):
        for e in (0, 2):
            r = 4 * i + e
            fin(f"v_pk_fma_f32 v[{U+r}:{U+r+1}], v[{vACC+r}:{vACC+r+1}], v[{P+r}:{P+r+1}], v[{U+r}:{U+r+1}]")
        for e in (0, 2):
            r = 4 * i + e
            fin(f"v_cvt_pk_bf16_f32 v{vX+r//2}, v{U+r}, v{U+r+1}")
        fin(f"buffer_store_dwordx2 v[{vX+2*i}:{vX+2*i+1}], v{vXO}, s[{SO}:{SO+3}], s{sXo} offen offset:{i*32}")
    if stamps:
        end("out_stamp:\ns_waitcnt vmcnt(0)")
        stamp(end, 6)
        end(f"v_writelane_b32 v51, s{sSpin}, 14")
        stamp_flush(end, "out")
    end("out_end:\ns_endpgm")
    a = [pro, py, l0, l1, l2, l0, l1, l2, l0, t1, t2, poll, red]
    c = [pro, ps, l2, l0, l1, l2, l0, t1, t2, poll, red]
    traces = [a + [fast, red2, silu, dec, fin, end], a + [red2, silu, dec, pub, pub2, late, fin, end],
              c + [fast, red2, dec, fin, end], c + [red2, dec, pub, pub2, late, fin, end]]
    insert_waits(traces)
    n = pad_hazards(traces, verbose)
    order = (pro, py, ps, l0, l1, l2, t1, t2, poll, red, fast, red2, silu, dec, pub, pub2, late, fin, end)
    if verbose:
        for blk in order:
            print(blk.name, estimate(blk)[:2], len(blk.ins))
    return dict(name="out_kernel", grid=256, block=256, lds=LDS_BYTES, vgpr=512, acc=256, sgpr=96,
                text="".join(x.text() for x in order))


if __name__ == "__main__":
    from build import assemble
    from k_ln import gen_ln
    from k_att import gen_att
    assemble([gen_ln(), gen_att(), gen_out(verbose=True)], f"cdna_kernels/{NAME}.s")
```

```python
from build import assemble
from k_ln import gen_ln
from k_att import gen_att
from k_out import gen_out
def nop(n):
    return dict(name=f"nop{n}_kernel", grid=256, block=64, lds=0, vgpr=8, acc=8, sgpr=16, text=f"nop{n}_kernel:\n  s_endpgm\n")
ln, att, out = gen_ln(), gen_att(), gen_out()
assemble([ln, att, out], "v0.s")
assemble([nop(0), ln, att, out], "v1.s")
assemble([ln, att, nop(0), out], "v2.s")
assemble([nop(0), nop(1), nop(2), nop(3), ln, att, out], "v3.s")
assemble([ln, att, nop(0), nop(1), nop(2), nop(3), out], "v4.s")
```

```python
import math
from isa import *
from sched import *
from common import *
from k_ln import srd

MF = "v_mfma_f32_16x16x32_bf16"
LOG2E = math.log2(math.e)
QSCALE = LOG2E * DH ** -0.5

WS, WQ, WG, WU, SK, SV, WT, WD = 4, 8, 12, 16, 20, 24, 28, 32
sJ, sW, sRB = 36, 37, 38
sX, sMW2, sWa, sH2, sMW, sH, sMK, sMV, sKo, sVo, sCnt, sC, sT0, sT1, sT2, sMT, sO, sRetry = range(56, 74)
sColG, sColT, sHb, sHt, sTs, sTd, sTstep = range(74, 81)
vXA, vXB = 1, 2
vDG, vDT, vDQ = 3, 6, 9
vTG, vTT, vTQ = 12, 20, 24
vDK, vDV, vRK, vRV = 28, 32, 34, 38
vTL, vTR, vL16 = 46, 48, 50
vPC, vPD = 60, 62
vTMP = 52
ACC = (64, 128)
vAF = 192
vQ, vS, vNEG, vLS, vP = 128, 64, 96, 112, 192
aO, aL, aONE, aK, aV, aT = 0, 128, 144, 160, 192, 224
L_K, L_V, L_W, L_T, L_FLAG = 0, 81920, 32768, 147456, 155648
RING = 4
LDS_BYTES = 163840


def f2u(x):
    import struct
    return "0x%08x" % struct.unpack("<I", struct.pack("<f", x))[0]


def r4(f, n):
    return f"{f}[{n}:{n+3}]"


def xreg(ks, qb):
    return r4("a", (ks * 4 + qb) * 4) if ks < 16 else r4("v", 224 + ((ks - 16) * 4 + qb) * 4)


def vslot(s):
    return ((s + 3) % 4) * 16384


T0 = 216


def setup(b):
    t = T0
    b(f"""att_kernel:
    s_cmp_ge_u32 s2, 256
    s_cbranch_scc1 att_end
    s_load_dwordx4 s[40:43], s[0:1], {ARG['k']}
    s_load_dwordx4 s[44:47], s[0:1], {ARG['wq']}
    s_load_dwordx4 s[48:51], s[0:1], {ARG['wg']}
    s_load_dwordx2 s[52:53], s[0:1], {ARG['wd']}
    s_load_dwordx2 s[54:55], s[0:1], {ARG['ws']}
    s_load_dwordx2 s[90:91], s[0:1], {ARG['x']}
    s_load_dwordx2 s[92:93], s[0:1], {ARG['out']}
    s_getpc_b64 s[82:83]
    v_lshlrev_b32 v{t}, 5, v0
    v_mov_b32 v{vPC+1}, s83
    v_add_co_u32 v{vPC}, vcc, s82, v{t}
    v_addc_co_u32 v{vPC+1}, vcc, 0, v{vPC+1}, vcc
    global_load_dword v{vPD}, v[{vPC}:{vPC+1}], off
    v_lshrrev_b32 v{t}, 6, v0
    v_and_b32 v{t+1}, 63, v0
    s_and_b32 s{sJ}, s2, 31
    v_readfirstlane_b32 s{sW}, v{t}
    v_lshlrev_b32 v{vL16}, 4, v{t+1}
    s_lshr_b32 s{sRB}, s2, 5
    s_lshl_b32 s{sRB}, s{sRB}, 2
    s_add_u32 s{sRB}, s{sRB}, s{sW}
    s_and_b32 s{sT0}, s{sJ}, 1
    s_lshl_b32 s{sT0}, s{sT0}, 11
    s_xor_b32 s{sT1}, s{sT0}, 2048
    v_add_u32 v{vXA}, s{sT0}, v{vL16}
    v_add_u32 v{vXB}, s{sT1}, v{vL16}""")
    b(f"""v_lshrrev_b32 v{t+2}, 3, v{t+1}
    s_mul_i32 s{sT2}, s{sW}, 48
    v_add_u32 v{t+2}, s{sT2}, v{t+2}
    v_lshrrev_b32 v{t+3}, 4, v{t+1}
    v_lshlrev_b32 v{t+3}, 1, v{t+3}
    v_and_b32 v{t+4}, 7, v{t+1}
    v_xor_b32 v{t+3}, v{t+3}, v{t+4}
    v_lshlrev_b32 v{t+3}, 4, v{t+3}
    v_mul_u32_u24 v{vDG}, {2*F}, v{t+2}
    v_add_u32 v{vDG}, v{vDG}, v{t+3}
    v_add_u32 v{vDG+1}, {8*2*F-1024}, v{vDG}
    v_add_u32 v{vDG+2}, {2*(8*2*F-1024)}, v{vDG}
    s_mul_i32 s{sX}, s{sRB}, {18*4096}
    s_add_u32 s{sX}, s{sX}, {WS_XN}
    s_mul_i32 s{sMW}, s{sW}, 6144
    s_add_u32 s{sMW}, s{sMW}, {L_W}
    s_lshl_b32 s{sColG}, s{sJ}, 8
    s_waitcnt lgkmcnt(0)""")
    srd(b, WG, 48, D * F * 2)
    srd(b, WS, 54, WS_BYTES)


def setup2(b):
    t = T0
    srd(b, WU, 50, D * F * 2)
    srd(b, WQ, 44, D * H * DH * 2)
    b(f"""s_lshl_b32 s{sT1}, s{sJ}, 19
    s_add_u32 s40, s40, s{sT1}
    s_addc_u32 s41, s41, 0
    s_add_u32 s42, s42, s{sT1}
    s_addc_u32 s43, s43, 0""")
    srd(b, SK, 40, S * DH * 2)
    srd(b, SV, 42, S * DH * 2)
    b(f"""v_lshlrev_b32 v{vDQ}, 13, v{t+2}
    v_add_u32 v{vDQ}, v{vDQ}, v{t+3}
    v_add_u32 v{vDQ+1}, {8*8192-1024}, v{vDQ}
    v_add_u32 v{vDQ+2}, {2*(8*8192-1024)}, v{vDQ}""")
    c, row, g1, key, g, a, z = t + 4, t + 5, t + 6, t + 7, t + 2, t + 3, t
    b(f"""v_and_b32 v{c}, 3, v{t+1}
    v_lshrrev_b32 v{row}, 2, v{t+1}
    v_bfe_u32 v{g1}, v{t+1}, 4, 1
    v_and_b32 v{key}, 15, v{t+1}
    v_lshrrev_b32 v{g}, 4, v{t+1}
    v_add_u32 v{a}, s{sT2}, v{row}
    v_mul_u32_u24 v{a}, {2*F}, v{a}
    v_lshlrev_b32 v{z}, 1, v{g1}
    v_xor_b32 v{z}, v{z}, v{c}
    v_lshl_add_u32 v{vDT}, v{z}, 4, v{a}
    v_add_u32 v{vDT+1}, {16*2*F-1024}, v{vDT}
    v_add_u32 v{vDT+2}, {2*(16*2*F-1024)}, v{vDT}
    s_mul_i32 s{sMW2}, s{sW}, 3072
    s_add_u32 s{sMW2}, s{sMW2}, {L_W}
    s_lshr_b32 s{sT0}, s{sJ}, 1
    s_lshl_b32 s{sColT}, s{sT0}, 6
    s_add_u32 s{sColT}, s{sColT}, 8192
    s_lshl_b32 s{sT1}, s2, 2
    s_add_u32 s{sT1}, s{sT1}, s{sW}
    s_sub_u32 s{sT2}, s{sT1}, 468
    s_cmp_lt_u32 s{sT1}, 468
    s_cselect_b32 s{WT}, s46, s52
    s_cselect_b32 s{WT+1}, s47, s53
    s_cselect_b32 s{WT+2}, {H*DH*D*2:#x}, s{WG+2}
    s_cselect_b32 s{sTstep}, 26, 29
    s_cselect_b32 s{sTd}, 0, {H*DH*D*2:#x}
    s_cselect_b32 s{sT1}, s{sT1}, s{sT2}
    s_and_b32 s{WT+1}, s{WT+1}, 0xffff
    s_mov_b32 s{WT+3}, 0x20000
    s_mul_i32 s{sTstep}, s{sTstep}, 36864
    s_add_u32 s{sTd}, s{sTd}, {WS_WT:#x}
    s_add_u32 s{WD}, s54, s{sTd}
    s_addc_u32 s{WD+1}, s55, 0
    s_and_b32 s{WD+1}, s{WD+1}, 0xffff
    s_mov_b32 s{WD+2}, s{WT+2}
    s_mov_b32 s{WD+3}, 0x20000
    s_cmp_lt_u32 s{sT1}, 522
    s_cselect_b32 s{sT1}, s{sT1}, 4000
    s_lshl_b32 s{sTd}, s{sT1}, 11
    s_mul_i32 s{sT2}, s{sT1}, 3641
    s_lshr_b32 s{sT2}, s{sT2}, 16
    s_mul_i32 s{sTs}, s{sT2}, 18
    s_sub_u32 s{sT1}, s{sT1}, s{sTs}
    s_lshl_b32 s{sT1}, s{sT1}, 6
    s_mul_i32 s{sTs}, s{sT2}, 36864
    s_add_u32 s{sTs}, s{sTs}, s{sT1}
    s_lshl_b32 s{sMT}, s{sW}, 11
    s_add_u32 s{sMT}, s{sMT}, {L_T}
    v_mul_u32_u24 v{a}, {2*D}, v{row}
    v_lshl_add_u32 v{vTL}, v{z}, 4, v{a}
    v_add_u32 v{vTL+1}, {16*2*D-1024}, v{vTL}
    s_mul_i32 s{sHb}, s{sRB}, {144*4096}
    s_add_u32 s{sHb}, s{sHb}, {WS_HF:#x}
    s_add_u32 s{sT0}, s{sT0}, 128
    s_lshl_b32 s{sT0}, s{sT0}, 12
    s_add_u32 s{sHt}, s{sHb}, s{sT0}
    s_lshl_b32 s{sT0}, s{sJ}, 14
    s_add_u32 s{sHb}, s{sHb}, s{sT0}
    s_lshl_b32 s{sO}, s{sRB}, 19
    s_add_u32 s{sO}, s{sO}, s{sT0}
    s_add_u32 s{sO}, s{sO}, {WS_OF:#x}
    s_lshl_b32 s{sMK}, s{sW}, 12
    s_add_u32 s{sMV}, s{sMK}, {L_V}
    s_mov_b32 s{sRetry}, 0""")
    b(f"""v_lshlrev_b32 v{a}, 6, v{row}
    v_add_u32 v{a}, {L_W}, v{a}
    v_lshl_add_u32 v{a}, v{c}, 3, v{a}
    v_lshl_add_u32 v{vTT}, v{g1}, 5, v{a}
    v_xor_b32 v{vTT+1}, 32, v{vTT}
    s_sub_u32 s{sT0}, s{sMT}, {L_W}
    v_add_u32 v{vTR}, s{sT0}, v{vTT}
    v_add_u32 v{vTR+1}, s{sT0}, v{vTT+1}
    v_add_u32 v{vTT+2}, 49152, v{vTT}
    v_add_u32 v{vTT+3}, 49152, v{vTT+1}
    v_lshlrev_b32 v{a}, 7, v{row}
    v_add_u32 v{a}, {L_W}, v{a}
    v_bfe_u32 v{z}, v{t+1}, 3, 2
    v_lshl_add_u32 v{vTG}, v{z}, 5, v{a}
    v_lshl_add_u32 v{vTG}, v{c}, 3, v{vTG}
    v_lshlrev_b32 v{z}, 1, v{z}
    v_xor_b32 v{z}, v{z}, v{c}
    v_lshl_add_u32 v{vTQ}, v{z}, 4, v{a}
    v_xor_b32 v{vTQ+1}, 64, v{vTQ}
    v_add_u32 v{vTQ+2}, 49152, v{vTQ}
    v_add_u32 v{vTQ+3}, 49152, v{vTQ+1}""")
    for n in range(1, 4):
        b(f"v_xor_b32 v{vTG+n}, {32*n}, v{vTG}")
    for n in range(4):
        b(f"v_add_u32 v{vTG+4+n}, 49152, v{vTG+n}")
    b(f"v_lshlrev_b32 v{a}, 8, v{g}\nv_add_u32 v{a}, s{sMK}, v{a}")
    for i in range(4):
        b(f"""v_add_u32 v{z}, {4*i}, v{g}
        v_xor_b32 v{z}, v{z}, v{key}
        v_lshl_add_u32 v{vDK+i}, v{z}, 4, v{a}""")
    for i in range(2):
        b(f"""v_add_u32 v{z}, {4*i}, v{g}
        v_lshlrev_b32 v{z}, 1, v{z}
        v_xor_b32 v{z}, v{z}, v{key}
        v_lshl_add_u32 v{vDV+i}, v{z}, 4, v{a}""")
    b(f"v_lshlrev_b32 v{a}, 8, v{key}")
    for kk in range(4):
        b(f"""v_add_u32 v{z}, {4*kk}, v{g}
        v_xor_b32 v{z}, v{z}, v{key}
        v_lshl_add_u32 v{vRK+kk}, v{z}, 4, v{a}""")
    b(f"""v_lshlrev_b32 v{a}, 8, v{row}
    v_lshl_add_u32 v{a}, v{c}, 3, v{a}
    v_add_u32 v{a}, {L_V}, v{a}
    v_and_b32 v{z}, 7, v{row}
    v_lshl_add_u32 v{vRV}, v{z}, 5, v{a}""")
    for dt in range(1, 8):
        b(f"v_xor_b32 v{vRV+dt}, {32*dt}, v{vRV}")
    b(f"""
    v_mov_b32 v{a}, {L_FLAG}
    v_mov_b32 v{z}, 0
    ds_write_b32 v{a}, v{z}""")


PREFETCH = [60, 440, 880, 1320, 1560]
PASSES = [("g", 4, 0), ("u", 4, 0), ("g", 4, 1), ("u", 4, 1), ("T", 2, 0), ("Q", 4, 0), ("Q", 4, 1)]


def w_dma(cidx):
    p, c = divmod(cidx, 3)
    kind, _, i2 = PASSES[p]
    out = []
    for s in range(2):
        if kind == "T":
            if s == 0:
                out.append(f"s_add_u32 s{sWa}, s{sColT}, {c*192*2*F}")
            out.append(f"s_add_u32 m0, s{sMW2}, {(cidx%RING)*24576 + s*12288}")
            r, vo = (WG, WU)[s], vDT
        else:
            pitch = 8192 if kind == "Q" else 2 * F
            out.append(f"s_add_u32 s{sWa}, s{sColG}, {(c*192 + s*24)*pitch + i2*128}")
            out.append(f"s_add_u32 m0, s{sMW}, {(cidx%RING)*24576 + s*3072}")
            r, vo = {"g": (WG, vDG), "u": (WU, vDG), "Q": (WQ, vDQ)}[kind]
        for i in range(3):
            out.append(f"buffer_load_dwordx4 v{vo+i}, s[{r}:{r+3}], s{sWa} offen offset:{i*1024} lds")
    return out


def x_loads(ks):
    out = [f"buffer_load_dwordx4 {xreg(ks, qb)}, v{vXA + qb//2}, s[{WS}:{WS+3}], s{sX} offen offset:{(qb&1)*1024}"
           for qb in range(4)]
    out.append(f"s_add_u32 s{sX}, s{sX}, 4096")
    return out


def kv_dma(which, slot):
    if which == "K":
        out = [f"s_add_u32 m0, s{sMK}, {L_K + slot*16384}"]
        out += [f"buffer_load_dwordx4 v{vDK+t}, s[{SK}:{SK+3}], s{sKo} offen offset:{t*1024} lds" for t in range(4)]
        out.append(f"s_add_u32 s{sKo}, s{sKo}, 16384")
    else:
        out = [f"s_add_u32 m0, s{sMV}, {vslot(slot)}"]
        out += [f"buffer_load_dwordx4 v{vDV+(t&1)}, s[{SV}:{SV+3}], s{sVo} offen offset:{t*1024} lds" for t in range(4)]
        out.append(f"s_add_u32 s{sVo}, s{sVo}, 16384")
    return out


def k_read(unit, kb, kk):
    return f"ds_read_b128 {r4('a', aK + (kb%2)*16 + kk*4)}, v{vRK+kk} offset:{L_K + (unit%4)*16384 + kb*4096}"


def v_read(unit, dt, m, half):
    r = aV + ((dt // 2) % 2) * 16 + ((dt % 2) * 2 + m) * 4 + half * 2
    return f"ds_read_b64_tr_b16 a[{r}:{r+1}], v{vRV+dt} offset:{vslot(unit%4) + m*8192 + half*4096}"


def sigmoid(regs):
    out = []
    for op in (f"v_mul_f32 v{{0}}, s{sC}, v{{0}}", "v_exp_f32 v{0}, v{0}", "v_add_f32 v{0}, 1.0, v{0}", "v_rcp_f32 v{0}, v{0}"):
        out += [op.format(r) for r in regs]
    return out


def h_store(reg, qb, sdst):
    return f"buffer_store_dwordx4 {r4('v', reg)}, v{vXA + qb//2}, s[{WS}:{WS+3}], s{sdst} offen offset:{(qb&1)*1024} sc1"


def q_epilogue(acc, half):
    out = []
    for qb in range(4):
        base = acc + qb * 16
        for e in range(16):
            out.append(f"v_mul_f32 v{base+e}, s{sC}, v{base+e}")
        for e in range(8):
            out.append(f"v_cvt_pk_bf16_f32 v{vQ+qb*16+half*8+e}, v{base+2*e}, v{base+2*e+1}")
    return out


def phase1(pro, b, stamps=False, knock=None, setup3=None, late=None):
    pro.add([Ins(t, "W0") for t in w_dma(0)])
    for ks in range(6):
        pro.add(x_loads(ks))
        if ks == 2:
            setup2(pro)
            if setup3: setup3(pro)
    pro(f"s_mov_b32 s{sC}, {f2u(-LOG2E)}\ns_mov_b32 s{sKo}, 0\ns_mov_b32 s{sVo}, 0")
    mf, groups = [], []
    for p, (kind, nqb, _) in enumerate(PASSES):
        acc = ACC[p % 2]
        for c in range(3):
            for kg in range(2):
                for t in range(4):
                    gi = len(groups)
                    groups.append(dict(p=p, c=c, kg=kg, t=t, start=len(mf), kind=kind))
                    for qb in range(nqb):
                        d = r4("v", acc + qb * 16 + t * 4)
                        for k in range(3):
                            ks = c * 6 + kg * 3 + k
                            a = r4("v", vAF + (gi % 2) * 12 + k * 4)
                            mf.append(f"{MF} {d}, {a}, {xreg(ks, qb)}, {'0' if ks == 0 else d}")
    N = len(mf)
    pstart = [next(g["start"] for g in groups if g["p"] == p) for p in range(7)] + [N]

    def reads(gi):
        g = groups[gi]
        out = []
        slot = (g["p"] * 3 + g["c"]) % RING
        hi = slot // 2
        for k in range(3):
            for half in range(2):
                off = 24576 * (slot % 2)
                kh = (g["kg"] * 3 + k) * 2 + half
                if g["kind"] == "T":
                    off += (g["t"] // 2) * 12288 + kh * 1024
                    va = vTT + 2 * hi + g["t"] % 2
                elif g["kind"] == "Q":
                    off += kh * 2048 + 8 * (g["t"] % 2)
                    va = vTQ + 2 * hi + g["t"] // 2
                else:
                    off += kh * 2048
                    va = vTG + 4 * hi + g["t"]
                r = vAF + (gi % 2) * 12 + k * 4 + half * 2
                out.append(f"ds_read_b64_tr_b16 v[{r}:{r+1}], v{va} offset:{off}")
        return out

    pro("WAITVM W0\ns_waitcnt lgkmcnt(0)\ns_barrier")
    if stamps: stamp(pro, 1)
    pro.add(reads(0))
    items, pinned, bar = [], {}, {-2: -1, -1: 96}
    for gi, g in enumerate(groups):
        if gi % 8 == 7:
            cidx = gi // 8
            gp = g["start"] - 1
            bar[cidx] = gp
            tags = f"W{cidx+1}" if cidx < 20 else "K0"
            pinned[gp] = [Ins("WAITVM " + tags), Ins("s_waitcnt lgkmcnt(0)"), Ins("s_barrier")]
    for gi, g in enumerate(groups[:-1]):
        st, nx = g["start"], groups[gi + 1]["start"]
        for k, t in enumerate(reads(gi + 1)):
            rdy = st - 1 + (k if nx - st == 12 else k // 2)
            items.append(Item(t, rdy, rdy + 2))

    def paced(ts, start, step, tag=None, space=5, slack=6):
        pos = start
        for t in ts:
            vm = t.startswith("buffer") or t.startswith("global")
            items.append(Item(t, pos - (0 if vm else 3), pos + slack, tag=tag, prio=pos - 20, space=space))
            if vm:
                pos += step
        return pos

    for c in (1, 2):
        pos = paced(w_dma(c), (c - 1) * 96 + 1, 3, tag=f"W{c}", space=3)
        for ks in range(6 * c, 6 * c + 6):
            pos = paced(x_loads(ks), pos, 3, space=3)
    pos = 192
    for tgt in range(3, 21):
        cidx = tgt - RING
        tail = PASSES[tgt // 3][0] == "T"
        start = max(bar[cidx] + 4 if cidx >= 0 else 0, pos)
        step = 6 if tgt < 7 else min((bar[cidx + 1] - bar[cidx] - 4) // 6, 10 if tail else 8)
        pos = paced(w_dma(tgt), start, step, tag=f"W{tgt}", space=min(step, 9 if tail else 5))
    for i, (which, slot) in enumerate((("K", 0), ("V", 0), ("K", 1))):
        pos = paced(kv_dma(which, slot), max(pos, bar[17] - 40 + 40 * i), 8, tag=f"{which}{slot}")
    if PREFETCH:
        for i, g in enumerate(PREFETCH):
            items.append(Item(f"v_add_co_u32 v{vPC}, vcc, 0x2000, v{vPC}", g - 20, g - 4))
            items.append(Item(f"v_addc_co_u32 v{vPC+1}, vcc, 0, v{vPC+1}, vcc", g - 18, g - 2))
            paced([f"global_load_dword v{vPD}, v[{vPC}:{vPC+1}], off"], g, 1)

    def spread(ts, st, en, space=5):
        for k, t in enumerate(ts):
            items.append(Item(t, st, en, prio=st + 16 + k * (en - st - 26) // len(ts), space=space))

    for p in range(6):
        kind, nqb, i2 = PASSES[p]
        st, en = pstart[p + 1], pstart[p + 2]
        acc = ACC[p % 2]
        if kind == "g":
            lo, hi = st - 30, en - 6
            for t in range(4):
                for q2 in range(2):
                    ts = sigmoid([acc + qb * 16 + t * 4 + e for qb in (2 * q2, 2 * q2 + 1) for e in range(4)])
                    j = t * 2 + q2
                    for k, x in enumerate(ts):
                        items.append(Item(x, st - 48 + t * 12 + q2 * 6 + 10, None,
                                          prio=lo + 16 + (j * 32 + k) * (hi - lo - 16) // 256))
        elif kind == "u":
            glen = 3 * PASSES[p + 1][1]
            for t in range(4):
                for qb in range(4):
                    done = st - 48 + t * 12 + qb * 3 + 2
                    need = st + t * glen + qb * 3 - 2 if qb < PASSES[p + 1][1] else en - 30
                    for e in range(4):
                        r = qb * 16 + t * 4 + e
                        items.append(Item(f"v_mul_f32 v{acc+r}, v{ACC[0]+r}, v{acc+r}", done + 5, need))
            ts = [f"s_add_u32 s{sH}, s{sHb}, {i2*8192}", f"s_add_u32 s{sH2}, s{sHb}, {i2*8192+4096}"]
            dst = [acc + qb * 16 for qb in range(4)] if i2 == 0 else [ACC[0] + 32 + qb * 8 for qb in range(4)]
            for qb in range(4):
                for e in range(8):
                    ts.append(f"v_cvt_pk_bf16_f32 v{dst[qb]+e}, v{acc+qb*16+2*e}, v{acc+qb*16+2*e+1}")
            spread(ts, st + 6, en - 4)
            last = en - 6 if i2 == 0 else pstart[p + 3] - 60
            first = st + (40 if i2 == 0 else 70)
            for k in range(8):
                g = first + k * (last - first) // 8
                items.append(Item(h_store(dst[k // 2] + 4 * (k % 2), k // 2, (sH, sH2)[k % 2]), g, last, prio=g))
        elif kind == "T":
            ts = []
            for qb in range(2):
                base = acc + qb * 16
                ts += sigmoid(range(base, base + 8))
                ts += [f"v_mul_f32 v{base+e}, v{base+e}, v{base+8+e}" for e in range(8)]
                ts += [f"v_cvt_pk_bf16_f32 v{base+e}, v{base+2*e}, v{base+2*e+1}" for e in range(4)]
            spread(ts, st + 4, en - 50)
            for qb in range(2):
                items.append(Item(h_store(acc + qb * 16, qb, sHt), en - 50 + 30 * qb, en - 4))
        else:
            spread([f"s_mov_b32 s{sC}, {f2u(QSCALE)}"] + q_epilogue(acc, 0), st + 4, en - 4)
    free9 = next(g["start"] for g in groups if g["p"] == 6 and g["c"] == 2)
    for r in range(144):
        ks = r // 16
        st = next(g["start"] for g in groups if g["p"] == 6 and g["c"] * 6 + g["kg"] * 3 > ks)
        items.append(Item(f"v_accvgpr_write_b32 a{r}, 0", st + 2, N - 6))
    ones = [f"v_and_b32 v{vTMP}, 3, v0", f"v_cmp_eq_u32 vcc, 0, v{vTMP}", f"v_mov_b32 v{vTMP+1}, 0x3f803f80",
            f"v_mov_b32 v{vTMP+2}, 0", f"v_cndmask_b32 v{vTMP}, v{vTMP+2}, v{vTMP+1}, vcc"]
    ones += [f"v_accvgpr_write_b32 a{aONE+i}, v{vTMP}" for i in range(4)]
    for k, t in enumerate(ones):
        items.append(Item(t, free9 + 2 + 2 * k, N - 6))
    for kk in range(4):
        items.append(Item(k_read(0, 0, kk), bar[20], N - 2))
    for t in late or ():
        items.append(Item(t, pstart[6] + 100, None))
    gaps = schedule(N, items, pinned)
    if stamps:
        t = Block()
        stamp(t, 2)
        gaps[pstart[1] - 1] = gaps[pstart[1] - 1] + t.ins
        for p in range(2, 7):
            t = Block()
            stamp(t, 7 + p)
            gaps[pstart[p] - 1] = gaps[pstart[p] - 1] + t.ins
    if knock:
        import re
        for gi in range(pstart[1], N):
            gaps[gi] = [x for x in gaps[gi] if not re.search(knock, (x.ins if isinstance(x, Item) else x).text)]
    weave(b, mf, gaps)
    b.add(q_epilogue(ACC[0], 1))


def first_max(b):
    for qb in range(4):
        d = r4("v", vS + qb * 4)
        for kk in range(4):
            b(f"{MF} {d}, {r4('a', aK + kk*4)}, {r4('v', vQ + qb*16 + kk*4)}, {'0' if kk == 0 else d}")
    for qb in range(4):
        s = vS + qb * 4
        b(f"v_max3_f32 v{vTMP+qb}, v{s}, v{s+1}, v{s+2}\nv_max_f32 v{vTMP+qb}, v{vTMP+qb}, v{s+3}")


def finish_max(b):
    for op in ("v_permlane32_swap_b32", "v_permlane16_swap_b32"):
        for qb in range(4):
            b(f"v_mov_b32 v{vTMP+4+qb}, v{vTMP+qb}")
        for qb in range(4):
            b(f"{op} v{vTMP+qb}, v{vTMP+4+qb}")
        for qb in range(4):
            b(f"v_max_f32 v{vTMP+qb}, v{vTMP+qb}, v{vTMP+4+qb}")
    for qb in range(4):
        for i in range(4):
            b(f"v_sub_f32 v{vNEG+qb*4+i}, 0, v{vTMP+qb}")


class Attn:
    def __init__(self, sumq=(0, 1, 2, 3), lag=7, barback=16):
        self.sumq = sumq
        self.more = []
        self.mk = []
        self.qk0, self.pv0 = [], []
        for i in range(4):
            self.qk0.append(len(self.mk))
            self.mk += [("qk", i, qb, kk) for qb in range(4) for kk in range(4)]
            self.pv0.append(len(self.mk))
            self.mk += [("pv", dt, qb, m) for dt in (2 * i, 2 * i + 1) for qb in range(4) for m in range(2)]
            if i in sumq:
                self.mk += [("sum", 0, i, m) for m in range(2)]
        self.G = G = len(self.mk)
        self.bar = G - barback
        NS = 6
        items, pinned = [], {}
        for u in range(NS):
            o = u * G
            pinned[o + self.bar] = [Ins("s_waitcnt vmcnt(8)"), Ins("s_barrier")]
            pinned[o + G - 1] = [Ins("s_cmp_eq_u32 s0, 0"), Ins("s_cbranch_scc1 x")]
            n = u + 1
            for kb in range(4):
                q0 = o + self.qk0[kb]
                q1 = o + (self.qk0[kb + 1] if kb < 3 else G)
                for e in range(16):
                    qb, t = divmod(e, 4)
                    g = q0 + lag + e * (q1 - q0) // 16
                    while g in pinned or (g % G) in (self.bar, G - 1):
                        g += 1
                    items.append(self.item(("exp", n, kb, qb, t), g, g))
                    if qb not in sumq:
                        items.append(self.item(("add", n, kb, qb, t), g + 1, g + 12))
                    if t % 2 == 1:
                        items.append(self.item(("cvt", n, kb, qb, t), g + 1, g + 5))
            for kb in range(4):
                use = o + self.qk0[kb]
                rdy = (o - G + self.bar) if kb < 2 else (o + self.qk0[kb - 2] + 16)
                rdy = max(rdy, use - 30)
                for kk in range(4):
                    items.append(self.item(("kr", n, kb, kk, 0), max(rdy, 0), max(use - 8 + kk, 0)))
            for dt in range(8):
                use = o + self.pv0[dt // 2] + (dt % 2) * 8
                rdy = (o - G + self.bar) if dt < 4 else (o + self.pv0[dt // 2 - 2] + 16)
                if dt in (2, 3):
                    rdy = max(rdy, o)
                rdy = max(rdy, use - 34)
                for m in range(2):
                    for half in range(2):
                        items.append(self.item(("vr", u, dt, m, half), max(rdy, 0), max(use - 8 + m, 0)))
            for wi, which in enumerate("KV"):
                for k in range(6):
                    pos = o + self.bar + 2 + (wi * 4 + min(max(k - 1, 0), 3)) * (G // 8)
                    pos += -1 if k == 0 else 0
                    items.append(self.item(("dma", u + 4 - wi, which, k, 0), pos, pos + 14))
        gaps = schedule(NS * G, items, pinned)

        def pat(u):
            return [[(it.key[0], it.key[1] - u) + it.key[2:] for it in gaps[u * G + g] if isinstance(it, Item)]
                    for g in range(G)]
        assert pat(3) == pat(4), "schedule is not periodic"
        self.pat = pat(3)

    def item(self, key, ready, deadline):
        return Item(self.text(key), ready, deadline, key=key)

    def text(self, key):
        k, n = key[0], key[1]
        if k in ("exp", "add", "cvt"):
            kb, qb, t = key[2:]
            s = vS + (kb % 2) * 16 + qb * 4 + t
            if k == "exp":
                return f"v_exp_f32 v{s}, v{s}"
            if k == "add":
                return f"v_add_f32 v{vLS+qb}, v{vLS+qb}, v{s}"
            p = vP + (n % 2) * 32 + qb * 8 + (kb // 2) * 4 + (kb % 2) * 2 + t // 2
            return f"v_cvt_pk_bf16_f32 v{p}, v{s-1}, v{s}"
        if k == "kr":
            return k_read(n, key[2], key[3])
        if k == "vr":
            return v_read(n, *key[2:])
        return kv_dma(key[2], n % 4)[key[3]]

    def mfma(self, u, key):
        k, i, qb, z = key
        if k == "qk":
            d = r4("v", vS + (i % 2) * 16 + qb * 4)
            c = r4("v", vNEG + qb * 4) if z == 0 else d
            return f"{MF} {d}, {r4('a', aK + (i%2)*16 + z*4)}, {r4('v', vQ + qb*16 + z*4)}, {c}"
        p = r4("v", vP + (u % 2) * 32 + qb * 8 + z * 4)
        if k == "pv":
            d = r4("a", aO + (i * 4 + qb) * 4)
            return f"{MF} {d}, {r4('a', aV + ((i//2)%2)*16 + ((i%2)*2 + z)*4)}, {p}, {d}"
        d = r4("a", aL + qb * 4)
        return f"{MF} {d}, {r4('a', aONE)}, {p}, {d}"

    def valid(self, key, n, last):
        k = key[0]
        if k == "dma":
            return n >= (2 if key[2] == "K" else 1) and not last
        if k == "kr" and n == 0 and key[2] == 0:
            return False
        return 0 <= n <= 31

    def place(self, extras):
        out, g = {}, 0
        for lo, text, tag in extras:
            ins = Ins(text, tag)
            g = max(g, lo)
            while True:
                used = [Ins(self.text((k[0], 4 + k[1]) + k[2:])) for k in self.pat[g]] + out.get(g, [])
                busy = sum(cost(i) for i in used if i.kind not in ("salu", "pseudo"))
                near = any(k[0] == "dma" and 1 <= k[3] <= 4 for d in (-2, -1, 1, 2) for k in self.pat[(g + d) % self.G])
                if g in (self.bar, self.G - 1):
                    ok = False
                elif ins.kind in ("salu", "pseudo"):
                    ok = not any(i.kind in ("salu", "vmem", "pseudo") for i in used)
                elif ins.kind == "vmem":
                    ok = not used and not near
                else:
                    ok = busy <= 4
                if ok:
                    break
                g += 1
            out.setdefault(g, []).append(ins)
            g += 4 if ins.kind == "vmem" else 1
        return out

    def wt_extras(self, u):
        kend = next(g for g in range(self.G) if ("dma", 2, "V", 4, 0) in self.pat[g])
        vset = next(g for g in range(self.G) if ("dma", 4, "K", 0, 0) in self.pat[g])
        if u % 4 == 0:
            ex = [(kend + 1, f"s_mov_b32 m0, s{sMT}", None)]
            ex += [(0, f"buffer_load_dwordx4 v{vTL+i}, s[{WT}:{WT+3}], s{sTs} offen offset:{i*1024} lds", "WT") for i in range(2)]
            out = self.place(ex + [(0, f"s_add_u32 s{sTs}, s{sTs}, s{sTstep}", None)])
            assert max(g for g, l in out.items() if any(i.kind == "vmem" for i in l)) < vset
            return out
        if u % 4 == 2:
            ex = [(40, "WAITVM WT", None)]
            ex += [(0, f"ds_read_b64_tr_b16 a[{aT+4*n+2*h}:{aT+4*n+2*h+1}], v{vTR+n} offset:{h*1024}", None)
                   for n in range(2) for h in range(2)]
            ex += [(76 + 20 * n, f"buffer_store_dwordx4 {r4('a', aT+4*n)}, v{vL16}, s[{WD}:{WD+3}], s{sTd} offen offset:{n*1024} sc1", "WTS")
                   for n in range(2)]
            return self.place(ex + [(0, f"s_add_u32 s{sTd}, s{sTd}, s{sTstep}", None)])
        if u % 4 == 1:
            return self.place(self.more)
        return {}

    def slot(self, b, u, tail=None):
        last = u == 31
        extra = self.wt_extras(u) if 0 <= u < 31 else {}
        for g in range(self.G):
            mk = self.mk[g]
            unit = u + 1 if mk[0] == "qk" else u
            if 0 <= unit <= 31:
                b(self.mfma(u, mk))
            if g == self.bar and u >= -1 and not last:
                b(f"WAITVM K{(u+2)%4} V{(u+1)%4}{' WTS' if u % 4 == 3 else ''}\ns_barrier")
            if g == self.G - 1 and tail:
                pre, post = tail
                b(pre)
            if u == -2 and g < self.bar:
                continue
            here = list(extra.get(g, []))
            for key in self.pat[g]:
                n = u + key[1]
                if self.valid(key, n, last):
                    full = (key[0], n) + key[2:]
                    here.append(Ins(self.text(full), f"{key[2]}{n%4}" if key[0] == "dma" else None))
            here.sort(key=lambda i: ORDER[i.kind])
            assert g != self.G - 1 or not any(i.kind == "salu" for i in here)
            b.add(here)
        if tail:
            b(tail[1])


def o_epilogue(b, sumq):
    for qb in range(4):
        if qb in sumq:
            b(f"v_accvgpr_read_b32 v{vLS+qb}, a{aL+qb*4}")
    rest = [qb for qb in range(4) if qb not in sumq]
    for op in ("v_permlane32_swap_b32", "v_permlane16_swap_b32"):
        for qb in rest:
            b(f"v_mov_b32 v{vTMP+qb}, v{vLS+qb}")
        for qb in rest:
            b(f"{op} v{vLS+qb}, v{vTMP+qb}")
        for qb in rest:
            b(f"v_add_f32 v{vLS+qb}, v{vLS+qb}, v{vTMP+qb}")
    for qb in range(4):
        b(f"v_rcp_f32 v{vLS+4+2*qb}, v{vLS+qb}")
    for qb in range(4):
        b(f"v_mov_b32 v{vLS+5+2*qb}, v{vLS+4+2*qb}")
    b(f"s_mov_b32 s{sT0}, s{sO}")
    n = 0
    for p in range(4):
        for qb in range(4):
            t = vP + (n % 4) * 16
            n += 1
            for e in range(8):
                b(f"v_accvgpr_read_b32 v{t+e}, a{aO + ((2*p + e//4)*4 + qb)*4 + e%4}")
            for e in range(4):
                b(f"v_pk_mul_f32 v[{t+2*e}:{t+2*e+1}], v[{t+2*e}:{t+2*e+1}], v[{vLS+4+2*qb}:{vLS+5+2*qb}]")
            for e in range(4):
                b(f"v_cvt_pk_bf16_f32 v{t+8+e}, v{t+2*e}, v{t+2*e+1}")
            vx = vXA if qb < 2 else vXB
            b(f"buffer_store_dwordx4 {r4('v', t+8)}, v{vx}, s[{WS}:{WS+3}], s{sT0} offen offset:{(qb&1)*1024}")
        if p < 3:
            b(f"s_add_u32 s{sT0}, s{sT0}, 4096")


SAFE_L = 2.0 ** 40


def stamp(b, n):
    b(f"""s_memtime s[84:85]
    s_memrealtime s[86:87]
    s_waitcnt lgkmcnt(0)""")
    if n == 0:
        b("s_mov_b32 s88, s84\ns_mov_b32 s89, s86\nv_mov_b32 v51, 0")
    b(f"""s_sub_u32 s84, s84, s88
    s_sub_u32 s86, s86, s89
    v_writelane_b32 v51, s84, {2*n}
    v_writelane_b32 v51, s86, {2*n+1}""")


def stamp_flush(b, pre='att'):
    b(f"""s_lshl_b32 s84, s2, 8
    s_add_u32 s84, s84, {WS_DBG:#x}
    v_lshlrev_b32 v52, 2, v0
    v_cmp_gt_u32 vcc, 64, v0
    s_and_saveexec_b64 s[86:87], vcc
    s_cbranch_execz {pre}_nostamp
    buffer_store_dword v51, v52, s[{WS}:{WS+3}], s84 offen
    {pre}_nostamp:
    s_mov_b64 exec, -1""")


def gen_att(sumq=(0, 1, 2, 3), lag=7, barback=16, verbose=False, force_retry=False, stamps=False, knock=None, knock2=None):
    A = Attn(sumq, lag, barback)
    pro, p1, fm, ap, lp, lp2, fin, rt, rl, rt2, end = (Block(n) for n in
        ("pro", "p1", "fmax", "apro", "loopabc", "loopd", "final", "retry", "retryloop", "retry2", "end"))
    setup(pro)
    if stamps: stamp(pro, 0)
    phase1(pro, p1, stamps, knock)
    if stamps: stamp(p1, 3)
    if knock or knock2: p1(f"s_mov_b32 s{sRetry}, 1")
    first_max(fm)
    ap("att_restart:")
    finish_max(ap)
    for qb in range(4):
        if qb not in sumq:
            ap(f"v_mov_b32 v{vLS+qb}, 0")
    ap(f"s_mov_b32 s{sCnt}, 7")
    A.slot(ap, -2)
    A.slot(ap, -1)
    if stamps: stamp(ap, 4)
    lp(".p2align 6\natt_loop:")
    A.slot(lp, 0)
    A.slot(lp, 1)
    A.slot(lp, 2, (f"s_cmp_eq_u32 s{sCnt}, 0", "s_cbranch_scc1 att_final"))
    A.slot(lp2, 3, (f"s_sub_u32 s{sCnt}, s{sCnt}, 1", "s_branch att_loop"))
    fin("att_final:")
    if stamps: stamp(fin, 5)
    A.slot(fin, 31)
    if stamps: stamp(fin, 6)
    o_epilogue(fin, sumq)
    if stamps:
        stamp(fin, 7)
        fin("s_waitcnt vmcnt(0)")
        stamp(fin, 8)
        stamp_flush(fin)
    fin(f"""v_add_f32 v{vTMP+1}, v{vLS}, v{vLS+1}
    v_add_f32 v{vTMP+2}, v{vLS+2}, v{vLS+3}
    v_add_f32 v{vTMP+1}, v{vTMP+1}, v{vTMP+2}
    v_mov_b32 v{vTMP+2}, {f2u(0.0 if force_retry else SAFE_L)}
    v_cmp_nge_f32 vcc, v{vTMP+2}, v{vTMP+1}
    v_mov_b32 v{vTMP+3}, {L_FLAG}
    v_mov_b32 v{vTMP+4}, 1
    s_and_saveexec_b64 s[44:45], vcc
    s_cbranch_execz att_noflag
    ds_write_b32 v{vTMP+3}, v{vTMP+4}
    att_noflag:
    s_mov_b64 exec, -1
    s_waitcnt lgkmcnt(0)
    s_barrier
    ds_read_b32 v{vTMP+4}, v{vTMP+3}
    s_waitcnt lgkmcnt(0)
    v_readfirstlane_b32 s{sT0}, v{vTMP+4}
    s_cmp_gt_u32 s{sT0}, s{sRetry}
    s_cbranch_scc0 att_end""")
    rt(f"""s_mov_b32 s{sRetry}, 1
    s_mov_b32 s{sKo}, 0
    s_mov_b32 s{sCnt}, 32
    s_waitcnt vmcnt(0)""")
    for qb in range(4):
        rt(f"v_mov_b32 v{vTMP+qb}, 0xff800000")
    rl("att_maxloop:\ns_barrier")
    rl.add(kv_dma("K", 0))
    rl("s_waitcnt vmcnt(0)\ns_barrier")
    for kb in range(4):
        for kk in range(4):
            rl(k_read(0, kb, kk))
        for qb in range(4):
            d = r4("v", vS + qb * 4)
            for kk in range(4):
                rl(f"{MF} {d}, {r4('a', aK + (kb%2)*16 + kk*4)}, {r4('v', vQ + qb*16 + kk*4)}, {'0' if kk == 0 else d}")
        for qb in range(4):
            s = vS + qb * 4
            rl(f"v_max3_f32 v{vTMP+qb}, v{vTMP+qb}, v{s}, v{s+1}\nv_max3_f32 v{vTMP+qb}, v{vTMP+qb}, v{s+2}, v{s+3}")
    rl(f"s_sub_u32 s{sCnt}, s{sCnt}, 1\ns_cmp_lg_u32 s{sCnt}, 0\ns_cbranch_scc1 att_maxloop")
    rt2(f"s_barrier\ns_mov_b32 s{sKo}, 0\ns_mov_b32 s{sVo}, 0")
    for which, slot in (("K", 0), ("V", 0), ("K", 1)):
        rt2.add([Ins(t, f"{which}{slot}") for t in kv_dma(which, slot)])
    for r in range(144):
        rt2(f"v_accvgpr_write_b32 a{r}, 0")
    rt2("s_waitcnt vmcnt(0)\ns_barrier")
    for kk in range(4):
        rt2(k_read(0, 0, kk))
    rt2("s_waitcnt lgkmcnt(0)\ns_branch att_restart")
    end("att_end:\ns_endpgm")
    if knock2:
        import re
        for blk in (lp, lp2):
            blk.ins = [x for x in blk.ins if not re.search(knock2, x.text)]
    main = [pro, p1, fm, ap, lp, lp2, lp, lp2, lp, fin]
    traces = [main + [end], main + [rt, rl, rl, rt2, ap, lp, lp2, lp, fin, end]]
    insert_waits(traces)
    n = pad_hazards(traces, verbose)
    if verbose:
        print("pads", n)
        for blk in (pro, p1, fm, ap, lp, lp2, fin):
            c, nm, over = estimate(blk)
            print(blk.name, "est cycles", c, "mfma", nm, "ideal", nm * 16, "ninstr", len(blk.ins), "over", len(over), sum(o[1] for o in over))
            if blk is p1: print([o[0] for o in over])
    text = "".join(x.text() for x in (pro, p1, fm, ap, lp, lp2, fin, rt, rl, rt2, end))
    return dict(name="att_kernel", grid=256, block=256, lds=LDS_BYTES, vgpr=512, acc=256, sgpr=96, text=text)


if __name__ == "__main__":
    from build import assemble
    from k_ln import gen_ln
    assemble([gen_ln(), gen_att(verbose=True)], "a.s")
    assemble([gen_ln(), gen_att(stamps=True)], "a_st.s")
```

```python
import re
from k_att import *
import k_att

SX, SO = 8, 12
sAy, sAs, sWy, sWs, sM3, sFG, sFOp, sFOc, sFY, sFS, sRecv, sSig, sPar, sPhi = range(40, 54)
sSend = 94
sA, sWc, sSpin, sXo = 56, 57, 58, 59
vA3, vW3, vB3, vO3 = 3, 11, 20, 23
vL8, vF, vONE = 63, 59, 58
aX = (160, 224, 192)
aW = 0
ACY, ACS = 64, 136
vSEND, vXI = 208, 244
XB_GEMM = 64 * 4 * 3 * 12288
SPIN_MAX = 200000
NST = 17
NPK = 4
OSIG, YSIG = 3, 12


def setup3(b):
    p, rb, cb, t = sT0, sT1, sT2, 81
    b(f"""s_and_b32 s{p}, s2, 3
    s_bfe_u32 s{rb}, s2, 0x10002
    s_lshl_b32 s{rb}, s{rb}, 3
    s_lshr_b32 s{t}, s2, 5
    s_add_u32 s{rb}, s{rb}, s{t}
    s_bfe_u32 s{cb}, s2, 0x20003
    s_and_b32 s{sPar}, s{p}, 1
    s_lshr_b32 s{sPhi}, s{p}, 1
    s_lshl_b32 s{sFOp}, s{t}, 2
    s_lshr_b32 s{t}, s{sJ}, 3
    s_add_u32 s{sFOp}, s{sFOp}, s{t}
    s_lshl_b32 s{sFOp}, s{sFOp}, 7
    s_add_u32 s{sFOp}, s{sFOp}, {WS_FLAG + 128:#x}
    s_lshr_b32 s{sFOc}, s{rb}, 1
    s_lshl_b32 s{sFOc}, s{sFOc}, 2
    s_add_u32 s{sFOc}, s{sFOc}, s{p}
    s_lshl_b32 s{sFOc}, s{sFOc}, 7
    s_add_u32 s{sFOc}, s{sFOc}, {WS_FLAG + 128:#x}
    s_mov_b32 s{sFG}, {WS_FLAG:#x}
    s_lshl_b32 s{t}, s{rb}, 2
    s_add_u32 s{t}, s{t}, s{cb}
    s_lshl_b32 s{sFY}, s{t}, 7
    s_add_u32 s{sFS}, s{sFY}, {WS_FLAG + 128*128:#x}
    s_add_u32 s{sFY}, s{sFY}, {WS_FLAG + 64*128:#x}
    s_mul_i32 s{t}, s{t}, {4*3*12288}
    s_mul_i32 s{sRecv}, s{sW}, 3072
    s_add_u32 s{t}, s{t}, s{sRecv}
    s_add_u32 s{t}, s{t}, {WS_SP:#x}
    s_mul_i32 s{sRecv}, s{p}, {3*12288}
    s_add_u32 s{sRecv}, s{sRecv}, s{t}""")
    for d in (1, 2, 3):
        b(f"""s_xor_b32 s{sSend+d-1}, s{p}, {d}
        s_mul_i32 s{sSend+d-1}, s{sSend+d-1}, {3*12288}
        s_add_u32 s{sSend+d-1}, s{sSend+d-1}, s{t}
        s_add_u32 s{sSend+d-1}, s{sSend+d-1}, {(d-1)*12288}""")
    b(f"""s_lshl_b32 s{t}, s{rb}, 1
    s_lshr_b32 s{sAy}, s{sW}, 1
    s_add_u32 s{t}, s{t}, s{sAy}
    s_lshl_b32 s{t}, s{t}, 2
    s_add_u32 s{t}, s{t}, s{p}
    s_mul_i32 s{sAy}, s{t}, {36*4096}
    s_add_u32 s{sAy}, s{sAy}, {WS_HF:#x}
    s_lshl_b32 s{sAs}, s{t}, 17
    s_add_u32 s{sAs}, s{sAs}, {WS_OF:#x}
    s_lshl_b32 s{t}, s{sW}, 2
    s_add_u32 s{t}, s{t}, s{cb}
    s_mul_i32 s{t}, s{t}, 9216
    s_add_u32 s{t}, s{t}, {WS_WT - 4096:#x}
    s_mul_i32 s{sWs}, s{p}, {32*36864}
    s_add_u32 s{sWs}, s{sWs}, s{t}
    s_mul_i32 s{sWy}, s{p}, {36*36864}
    s_add_u32 s{sWy}, s{sWy}, s{t}
    s_add_u32 s{sWy}, s{sWy}, {128*36864}
    s_mul_i32 s{sM3}, s{sW}, 9216
    s_cmp_eq_u32 s{sW}, 0
    s_cselect_b32 s{sSig}, 2, 99
    s_lshl_b32 s97, s{rb}, 3
    s_lshl_b32 s{t}, s{sW}, 1
    s_add_u32 s97, s97, s{t}
    s_add_u32 s97, s97, s{sPhi}
    s_mul_i32 s97, s97, {16*2*D}
    s_mul_i32 s{t}, s{cb}, 288
    s_add_u32 s97, s97, s{t}
    s_and_b32 s98, s{sW}, 1
    s_lshl_b32 s98, s98, 1
    s_add_u32 s98, s98, s{sPhi}
    s_lshl_b32 s98, s98, 10""")


def late_vregs():
    t = T0
    out = [f"v_add_u32 v{vA3}, s98, v{vL16}", f"v_xor_b32 v{vA3+1}, 1024, v{vA3}"]
    for m in range(1, 4):
        out += [f"v_add_u32 v{vA3+2*m+i}, {4096*m}, v{vA3+i}" for i in range(2)]
    out.append(f"v_mov_b32 v{t}, s{sPar}")
    for i in range(9):
        out.append(f"v_mul_i32_i24 v{t+1}, {(8-2*i)*1024}, v{t}")
        out.append(f"v_add_u32 v{t+1}, {4096 + (i - i%4)*1024}, v{t+1}")
        out.append(f"v_add_u32 v{vW3+i}, v{t+1}, v{vL16}")
    for i in range(3):
        out.append(f"v_add_u32 v{vB3+i}, {36864*i}, v{vL16}")
    out += [f"v_lshrrev_b32 v{vL8}, 1, v{vL16}",
            f"v_and_b32 v{t+2}, 15, v0", f"v_mul_u32_u24 v{t+2}, {2*D}, v{t+2}",
            f"v_bfe_u32 v{t+3}, v0, 4, 2", f"v_lshl_add_u32 v{t+2}, v{t+3}, 3, v{t+2}"]
    for i in range(5):
        k = (8 - 2 * i) * 32 if i < 4 else 0x400000
        out.append(f"v_mul_u32_u24 v{t+3}, {k}, v{t}")
        out.append(f"v_add_u32 v{t+3}, {32*i}, v{t+3}")
        out.append(f"v_add_u32 v{vO3+i}, v{t+3}, v{t+2}")
    return out


def p3_loads(s):
    out = []
    if s in (0, 9):
        out += [f"s_mov_b32 s{sWc}, s{sWy if s == 0 else sWs}"]
    else:
        out += [f"s_add_u32 s{sWc}, s{sWc}, {4*36864}"]
    for i in range(9):
        if i % 4 == 0:
            out.append(f"s_add_u32 m0, s{sM3}, {(s%3)*36864 + i*1024}")
        out.append(f"buffer_load_dwordx4 v{vW3+i}, s[{WS}:{WS+3}], s{sWc} offen offset:{i%4*1024} sc1 lds")
    if s in (0, 9):
        out += [f"s_mov_b32 s{sA}, s{sAy if s == 0 else sAs}"]
    else:
        out += [f"s_add_u32 s{sA}, s{sA}, 16384"]
    for q in range(2):
        for m in range(4):
            out.append(f"buffer_load_dwordx4 {r4('a', aX[s%3] + (q*4+m)*4)}, v{vA3+2*m+q}, s[{WS}:{WS+3}], s{sA} offen sc1")
    return out


def poll_load(flag):
    return f"buffer_load_dword v{vF}, off, s[{WS}:{WS+3}], s{flag} sc1"


def poll_check(name, need):
    return [Ins(f"v_readfirstlane_b32 s{sT0}, v{vF}"), Ins(f"s_cmp_ge_u32 s{sT0}, {need}"),
            Ins(f"s_cbranch_scc0 spin_{name}"), Ins(f"back_{name}:")]


def spin_block(b, name, flag, need):
    b(f"""spin_{name}:
    s_mov_b32 s{sSpin}, {SPIN_MAX}
    spin_{name}_loop:
    {poll_load(flag)}
    s_waitcnt vmcnt(0)
    v_readfirstlane_b32 s{sT0}, v{vF}
    s_nop 0
    s_cmp_ge_u32 s{sT0}, {need}
    s_cbranch_scc1 back_{name}
    s_sleep 1
    s_sub_u32 s{sSpin}, s{sSpin}, 1
    s_cmp_lg_u32 s{sSpin}, 0
    s_cbranch_scc1 spin_{name}_loop
    s_branch back_{name}""")


def signal(name):
    return [Ins(f"s_cmp_eq_u32 s{sW}, 0"), Ins(f"s_cbranch_scc1 sig_{name}"), Ins(f"sigd_{name}:")]


def signal_block(b, name, flag, back=None):
    b(f"""sig_{name}:
    v_mov_b32 v{vONE}, 1
    s_mov_b64 exec, 1
    buffer_atomic_add v{vONE}, off, s[{WS}:{WS+3}], s{flag} sc1
    s_mov_b64 exec, -1
    s_nop 3
    s_branch {back or 'sigd_' + name}""")


MSG = {1: [(0, 8 - k) for k in range(5)], 2: [(1, k) for k in range(5)], 3: [(1, 8 - k) for k in range(5)]}


def xfer(op, reg, piece, soff):
    if piece < 2:
        return f"buffer_{op}_dwordx4 {r4('v', reg + piece*4)}, v{vL16}, s[{WS}:{WS+3}], s{soff} offen offset:{piece*1024} sc1"
    return f"buffer_{op}_dwordx2 v[{reg+8}:{reg+9}], v{vL8}, s[{WS}:{WS+3}], s{soff} offen offset:2048 sc1"


def recv(base):
    out = []
    for d in range(3):
        out += [xfer("load", base + d * 12, i, sRecv) for i in range(3)]
        out.append(f"s_add_u32 s{sRecv}, s{sRecv}, {12288 if d < 2 else XB_GEMM - 2*12288}")
    return out


def add_partials(b, acc, rx, tmp):
    for d in range(3):
        for k in range(10):
            t = tmp + (k % 4) * 2
            b(f"""v_lshlrev_b32 v{t}, 16, v{rx+d*12+k}
            v_and_b32 v{t+1}, 0xffff0000, v{rx+d*12+k}
            v_pk_add_f32 v[{acc+2*k}:{acc+2*k+1}], v[{acc+2*k}:{acc+2*k+1}], v[{t}:{t+1}]""")


def final_slot(A, b):
    mf = [A.mfma(31, k) for k in A.mk if k[0] != "qk"]
    start = [next(i for i, k in enumerate(x for x in A.mk if x[0] != "qk") if k[0] == "pv" and k[1] == dt) for dt in range(8)]
    items, head = [], []
    for g in range(A.G):
        for key in A.pat[g]:
            n = 31 + key[1]
            if not A.valid(key, n, True):
                continue
            t = A.text((key[0], n) + key[2:])
            if key[0] == "vr":
                dt = key[2]
                if dt < 2:
                    head.append(t)
                else:
                    rdy = -1 if dt < 4 else start[dt - 4] + 7
                    items.append(Item(t, rdy, max(start[dt] - 8, 0)))
            else:
                items.append(Item(t, -1, 4))
    b.add(head)
    pinned = {5: [Ins("s_waitcnt vmcnt(0)"), Ins("s_barrier")] + poll_check("g", 256)}
    pos = 7
    for t in p3_loads(0):
        vm = t.startswith("buffer")
        items.append(Item(t, pos - (0 if vm else 1), pos + 2, tag="P0" if "lds" in t else None, prio=pos - 20, space=2))
        pos += 4 * vm
    weave(b, mf, schedule(len(mf), items, pinned))


def o_store(n):
    p, qb = divmod(n, 4)
    out = [f"s_add_u32 s{sT1}, s{sO}, {p*4096}"] if qb == 0 else []
    return out + [f"buffer_store_dwordx4 {r4('v', vP+n*4)}, v{vXA + qb//2}, s[{WS}:{WS+3}], s{sT1} offen offset:{(qb&1)*1024} sc1"]


def o_pack(b, sumq, fillers):
    for qb in range(4):
        if qb in sumq:
            b(f"v_accvgpr_read_b32 v{vLS+qb}, a{aL+qb*4}")
    rest = [qb for qb in range(4) if qb not in sumq]
    for op in ("v_permlane32_swap_b32", "v_permlane16_swap_b32"):
        for qb in rest:
            b(f"v_mov_b32 v{vTMP+qb}, v{vLS+qb}")
        for qb in rest:
            b(f"{op} v{vLS+qb}, v{vTMP+qb}")
        for qb in rest:
            b(f"v_add_f32 v{vLS+qb}, v{vLS+qb}, v{vTMP+qb}")
    for qb in range(4):
        b(f"v_rcp_f32 v{vLS+4+2*qb}, v{vLS+qb}")
    for qb in range(4):
        b(f"v_mov_b32 v{vLS+5+2*qb}, v{vLS+4+2*qb}")
    fillers = list(fillers)
    for n in range(16):
        p, qb = divmod(n, 4)
        while fillers:
            x = fillers.pop(0)
            b.add(x)
            if x.kind == "vmem" and n < 15:
                break
        t = vS + (n % 2) * 8
        for e in range(8):
            b(f"v_accvgpr_read_b32 v{t+e}, a{aO + ((2*p + e//4)*4 + qb)*4 + e%4}")
        for e in range(4):
            b(f"v_pk_mul_f32 v[{t+2*e}:{t+2*e+1}], v[{t+2*e}:{t+2*e+1}], v[{vLS+4+2*qb}:{vLS+5+2*qb}]")
        for e in range(4):
            b(f"v_cvt_pk_bf16_f32 v{vP+n*4+e}, v{t+2*e}, v{t+2*e+1}")
        if NPK and n % (16 // NPK) == 16 // NPK - 1:
            b.add([Ins(t2, "OS") for t2 in o_store(n // (16 // NPK))])


def phase3(b, tail, stamps):
    groups = []
    for s in range(NST):
        order = [8, 7, 6, 5, 4, 0, 1, 2, 3] if s in (8, 16) else range(9)
        groups += [(s, t) for t in order]
    mf, done = [], {}
    for G, (s, t) in enumerate(groups):
        acc = ACY if s < 9 else ACS
        for q in range(2):
            d = r4("v", acc + (q * 9 + t) * 4)
            for m in range(4):
                c = "0" if s in (0, 9) and m == 0 else d
                mf.append(f"{MF} {d}, {r4('a', aW + (G%3)*16 + m*4)}, {r4('a', aX[s%3] + (q*4+m)*4)}, {c}")
            done[(s, q, t)] = len(mf) - 1
    N = len(mf)

    def reads(G):
        s, t = groups[G]
        return [f"ds_read_b128 {r4('a', aW + (G%3)*16 + m*4)}, v{vB3 + s%3} offset:{m*9216 + t*1024}" for m in range(4)]
    b.add(reads(0) + reads(1))
    items, pinned = [], {}
    bar = {s: s * 72 + 57 for s in range(NST - 1)}
    for s in bar:
        tags = f"P{s+1}" + {OSIG: " OS", YSIG: " YS"}.get(s, "")
        pinned[bar[s]] = [Ins("WAITVM " + tags), Ins("s_waitcnt lgkmcnt(0)"), Ins("s_barrier")]
    pinned[bar[OSIG] + 1] = signal("o")
    pinned[bar[YSIG] + 1] = signal("y")
    for G in range(len(groups) - 2):
        st = G * 8 - 1
        if G % 9 == 7:
            st = bar[G // 9]
        for k, t in enumerate(reads(G + 2)):
            items.append(Item(t, st + k // 2, st + 3 + k // 2))

    def paced(ts, pos, step, tag=None, only_lds=False, space=2):
        for t in ts:
            vm = t.startswith("buffer") or t.startswith("global")
            tg = tag if (not only_lds or "lds" in t) else None
            items.append(Item(t, int(pos) - (0 if vm else 2), int(pos) + 3, tag=tg, prio=int(pos) - 20, space=space))
            pos += step * vm
        return pos
    paced([t for n in range(NPK, 16) for t in o_store(n)], 3, OSIG * 72 / (16 - NPK), "OS")
    for s in range(NST - 2):
        paced(p3_loads(s + 2), s * 72 + 1, 4, f"P{s+2}", True)
    paced([poll_load(sFOc)], 6 * 72 + 69, 1)
    pinned[7 * 72 + 33] = poll_check("o", 8)
    paced([poll_load(sFY)], 14 * 72 + 69, 1)
    pinned[15 * 72 + 40] = poll_check("y", 4)
    srdb = Block()
    srd(srdb, SX, 90, S * D * 2)
    srd(srdb, SO, 92, S * D * 2)
    for k, i in enumerate(srdb.ins):
        items.append(Item(i.text, 100 + 2 * k, 200))
    paced([f"buffer_load_dwordx2 v[{vXI+2*i}:{vXI+2*i+1}], v{vO3+i}, s[{SX}:{SX+3}], s97 offen" for i in range(5)], 15 * 72 + 4, 6)
    for g, step in ((70, 0x2000), (420, 0x2000), (790, 0x1000)):
        items.append(Item(f"v_add_co_u32 v{vPC}, vcc, {step:#x}, v{vPC}", g - 20, g - 4))
        items.append(Item(f"v_addc_co_u32 v{vPC+1}, vcc, 0, v{vPC+1}, vcc", g - 18, g - 2))
        paced([f"global_load_dword v{vPD}, v[{vPC}:{vPC+1}], off"], g, 1)
    for s, acc, tag in ((8, ACY, "YS"), (16, ACS, "SS")):
        for d in (1, 3, 2):
            for k, (q, t) in enumerate(MSG[d]):
                r = acc + (q * 9 + t) * 4
                for h in range(2):
                    items.append(Item(f"v_cvt_pk_bf16_f32 v{vSEND+(d-1)*12+2*k+h}, v{r+2*h}, v{r+2*h+1}", done[(s, q, t)] + 5, None,
                                      prio=done[(s, q, t)] + 8))
            for i in range(3):
                lo = 8 * 72 + 43 + ((1, 3, 2).index(d) * 3 + i) * ((YSIG - 8) * 72 - 50) // 9 if s == 8 else 0
                items.append(Item(xfer("store", vSEND + (d - 1) * 12, i, sSend + d - 1), lo, lo + 8 if s == 8 else None,
                                  tag=tag, prio=s * 72, space=2))
            if s == 8:
                items.append(Item(f"s_add_u32 s{sSend+d-1}, s{sSend+d-1}, {XB_GEMM}", 0, 14 * 72))
        if s == 8:
            paced(recv(ACY + 20), 15 * 72 + 42, 4)
    gaps = schedule(N, items, pinned)
    if stamps:
        for n, s in ((7, 1), (8, 9), (18, 2), (19, 7), (20, 8), (21, 10), (22, 15)):
            t = Block()
            stamp(t, n)
            gaps[s * 72 - 1] = gaps[s * 72 - 1] + t.ins
    weave(b, mf, gaps)
    if stamps: stamp(tail, 14)
    U = ACY + 56
    add_partials(tail, ACY, ACY + 20, U)
    tail(f"s_mov_b32 s{sC}, {f2u(-LOG2E)}")
    G2 = ACY + 20
    ops = (f"v_mul_f32 v{{0}}, s{sC}, v{{1}}", "v_exp_f32 v{0}, v{0}", "v_add_f32 v{0}, 1.0, v{0}", "v_rcp_f32 v{0}, v{0}")
    for k, op in enumerate(ops):
        if k == 1:
            tail("s_waitcnt vmcnt(0)\ns_barrier")
            tail.add(signal("s"))
        if k == 2:
            tail(poll_load(sFS))
        for r in range(20):
            tail(op.format(G2 + r, ACY + r))
    for r in range(0, 20, 2):
        tail(f"v_pk_mul_f32 v[{ACY+r}:{ACY+r+1}], v[{ACY+r}:{ACY+r+1}], v[{G2+r}:{G2+r+1}]")
    for i in range(10):
        tail(f"v_lshlrev_b32 v{G2+2*i}, 16, v{vXI+i}\nv_and_b32 v{G2+2*i+1}, 0xffff0000, v{vXI+i}")
    if stamps: stamp(tail, 15)
    tail.add(poll_check("s", 4))
    if stamps: stamp(tail, 16)
    tail.add(recv(ACS + 20))
    add_partials(tail, ACS, ACS + 20, U)
    for i in range(5):
        for e in (0, 2):
            r = 4 * i + e
            tail(f"v_pk_fma_f32 v[{G2+r}:{G2+r+1}], v[{ACS+r}:{ACS+r+1}], v[{ACY+r}:{ACY+r+1}], v[{G2+r}:{G2+r+1}]")
        for e in (0, 2):
            r = 4 * i + e
            tail(f"v_cvt_pk_bf16_f32 v{vXI+r//2}, v{G2+r}, v{G2+r+1}")
        tail(f"buffer_store_dwordx2 v[{vXI+2*i}:{vXI+2*i+1}], v{vO3+i}, s[{SO}:{SO+3}], s97 offen")
    if stamps:
        tail("s_waitcnt vmcnt(0)")
        stamp(tail, 17)
        stamp_flush(tail)
    tail("s_endpgm")


def gen_fused(sumq=(0, 1, 2, 3), lag=7, barback=16, verbose=False, force_retry=False, stamps=False):
    A = Attn(sumq, lag, barback)
    A.more = [(20, poll_load(sFG), None), (60, f"global_load_dword v{vPD}, v[{vPC}:{vPC+1}], off", None)]
    pro, p1, fm, ap, lp, lp2, fin, p3, tail, side, rt, rl, rt2, end = (Block(n) for n in
        ("pro", "p1", "fmax", "apro", "loopabc", "loopd", "final", "p3", "tail", "side", "retry", "retryloop", "retry2", "end"))
    setup(pro)
    if stamps: stamp(pro, 0)
    phase1(pro, p1, stamps, None, setup3, late_vregs())
    if stamps: stamp(p1, 3)
    first_max(fm)
    fm(f"""s_getpc_b64 s[82:83]
    att_pc2:
    s_add_u32 s82, s82, sig_g-att_pc2
    s_addc_u32 s83, s83, 0
    v_lshlrev_b32 v{vPC}, 5, v0
    v_mov_b32 v{vPC+1}, s83
    v_add_co_u32 v{vPC}, vcc, s82, v{vPC}
    v_addc_co_u32 v{vPC+1}, vcc, 0, v{vPC+1}, vcc""")
    ap("att_restart:")
    finish_max(ap)
    for qb in range(4):
        if qb not in sumq:
            ap(f"v_mov_b32 v{vLS+qb}, 0")
    ap(f"s_mov_b32 s{sCnt}, 7")
    A.slot(ap, -2)
    A.slot(ap, -1)
    if stamps: stamp(ap, 4)
    lp(".p2align 6\natt_loop:")
    A.slot(lp, 0)
    A.slot(lp, 1)
    A.slot(lp, 2, (f"s_cmp_eq_u32 s{sCnt}, 0", "s_cbranch_scc1 att_final"))
    A.slot(lp2, 3, (f"s_sub_u32 s{sCnt}, s{sCnt}, 1", f"s_cmp_lg_u32 s{sCnt}, s{sSig}\ns_cbranch_scc1 att_loop"))
    fin("att_final:")
    if stamps: stamp(fin, 5)
    final_slot(A, fin)
    o_pack(fin, sumq, [Ins(t, "P1" if "lds" in t else None) for t in p3_loads(1)])
    fin(f"""v_add_f32 v{vTMP+1}, v{vLS}, v{vLS+1}
    v_add_f32 v{vTMP+2}, v{vLS+2}, v{vLS+3}
    v_add_f32 v{vTMP+1}, v{vTMP+1}, v{vTMP+2}
    v_mov_b32 v{vTMP+2}, {f2u(0.0 if force_retry else SAFE_L)}
    v_cmp_nge_f32 vcc, v{vTMP+2}, v{vTMP+1}
    v_mov_b32 v{vTMP+3}, {L_FLAG}
    v_mov_b32 v{vTMP+4}, 1
    s_and_saveexec_b64 s[82:83], vcc
    s_cbranch_execz att_noflag
    ds_write_b32 v{vTMP+3}, v{vTMP+4}
    att_noflag:
    s_mov_b64 exec, -1
    WAITVM P0
    s_waitcnt lgkmcnt(0)
    s_barrier
    ds_read_b32 v{vTMP+4}, v{vTMP+3}
    s_waitcnt lgkmcnt(0)
    v_readfirstlane_b32 s{sT0}, v{vTMP+4}
    s_cmp_gt_u32 s{sT0}, s{sRetry}
    s_cbranch_scc1 att_retry""")
    if stamps: stamp(fin, 6)
    phase3(p3, tail, stamps)
    signal_block(side, "g", sFG, "att_loop")
    for name, flag, need in (("g", sFG, 256), ("o", sFOc, 8), ("y", sFY, 4), ("s", sFS, 4)):
        spin_block(side, name, flag, need)
    for name, flag in (("o", sFOp), ("y", sFY), ("s", sFS)):
        signal_block(side, name, flag)
    rt(f"""att_retry:
    s_mov_b32 s{sRetry}, 1
    s_mov_b32 s{sSig}, 99
    s_mov_b32 s{sKo}, 0
    s_mov_b32 s{sCnt}, 32
    s_waitcnt vmcnt(0)""")
    for qb in range(4):
        rt(f"v_mov_b32 v{vTMP+qb}, 0xff800000")
    rl("att_maxloop:\ns_barrier")
    rl.add(kv_dma("K", 0))
    rl("s_waitcnt vmcnt(0)\ns_barrier")
    for kb in range(4):
        for kk in range(4):
            rl(k_read(0, kb, kk))
        for qb in range(4):
            d = r4("v", vS + qb * 4)
            for kk in range(4):
                rl(f"{MF} {d}, {r4('a', aK + (kb%2)*16 + kk*4)}, {r4('v', vQ + qb*16 + kk*4)}, {'0' if kk == 0 else d}")
        for qb in range(4):
            s = vS + qb * 4
            rl(f"v_max3_f32 v{vTMP+qb}, v{vTMP+qb}, v{s}, v{s+1}\nv_max3_f32 v{vTMP+qb}, v{vTMP+qb}, v{s+2}, v{s+3}")
    rl(f"s_sub_u32 s{sCnt}, s{sCnt}, 1\ns_cmp_lg_u32 s{sCnt}, 0\ns_cbranch_scc1 att_maxloop")
    rt2(f"s_barrier\ns_mov_b32 s{sKo}, 0\ns_mov_b32 s{sVo}, 0")
    for which, slot in (("K", 0), ("V", 0), ("K", 1)):
        rt2.add([Ins(t, f"{which}{slot}") for t in kv_dma(which, slot)])
    for r in range(144):
        rt2(f"v_accvgpr_write_b32 a{r}, 0")
    rt2("s_waitcnt vmcnt(0)\ns_barrier")
    for kk in range(4):
        rt2(k_read(0, 0, kk))
    rt2("s_waitcnt lgkmcnt(0)\ns_branch att_restart")
    end("att_end:\ns_endpgm")
    main = [pro, p1, fm, ap, lp, lp2, lp, lp2, lp, fin]
    traces = [main + [p3, tail], main + [rt, rl, rl, rt2, ap, lp, lp2, lp, fin, p3, tail]]
    insert_waits(traces)
    n = pad_hazards(traces + [[side]], verbose)
    if verbose:
        print("pads", n)
        for blk in (pro, p1, fm, ap, lp, lp2, fin, p3, tail):
            c, nm, over = estimate(blk)
            print(blk.name, "est cycles", c, "mfma", nm, "ideal", nm * 16, "ninstr", len(blk.ins), "over", len(over), sum(o[1] for o in over))
    text = "".join(x.text() for x in (pro, p1, fm, ap, lp, lp2, side, fin, p3, tail, rt, rl, rt2, end))
    return dict(name="att_kernel", grid=256, block=256, lds=LDS_BYTES, vgpr=512, acc=256, sgpr=102, text=text,
                spans=[("att_kernel", 1 + len(k_att.PREFETCH), 8192 * (1 + len(k_att.PREFETCH))), ("sig_g", 4, 0x7000)])


if __name__ == "__main__":
    from build import assemble
    from k_ln import gen_ln
    print(assemble([gen_ln(), gen_fused(verbose=True)], "f.s"))
    assemble([gen_ln(), gen_fused(stamps=True)], "f_st.s")
    assemble([gen_ln(), gen_fused(force_retry=True)], "f_rt.s")
```

```python
NAME = "recurrent_scan__mha_block_cached__glu_gated_glu__prompt"
S, D, H, DH, F = 2048, 576, 32, 128, 4608
WS_XN = 0
WS_HF = 0x0300000
WS_OF = 0x1600000
OF_STRIDE = 128 * 4096
WS_WT = 0x2680000
WS_SP = 0x3100000
WS_FLAG = 0x4400000
WS_ST = 0x4500000
WS_DBG = 0x4800000
WS_BYTES = 268435456
ARG = dict(x=0, k=8, v=16, wq=24, wo=32, bx=40, wg=48, wu=56, wd=64, out=72, dbg=80, ws=88)
```

```python
import re

TRANS = ("v_exp_f32", "v_log_f32", "v_rcp_f32", "v_rsq_f32", "v_sqrt_f32", "v_sin_f32", "v_cos_f32")
REG_RE = re.compile(r"(?<![\w.])(-?)(?:abs\()?([vas])(?:(\d+)|\[(\d+):(\d+)\])(?![\w])")


def regs_of(tok):
    tok = tok.strip()
    out = []
    for m in REG_RE.finditer(tok):
        f = m.group(2)
        if m.group(3) is not None:
            out.append((f, int(m.group(3))))
        else:
            out += [(f, r) for r in range(int(m.group(4)), int(m.group(5)) + 1)]
    for name in ("vcc", "m0", "exec"):
        if re.search(r"(?<![\w])" + name + r"(?![\w])", tok):
            out.append((name, 0))
    return out


class Ins:
    def __init__(self, text, tag=None):
        self.text = text.strip()
        self.tag = tag
        t = self.text.split(";")[0].strip()
        self.rd, self.wr = set(), set()
        self.srcc = set()
        self.srcab = set()
        self.data = set()
        if t.endswith(":") or t.startswith("."):
            self.op, self.kind = t, "label"
            return
        parts = t.split(None, 1)
        self.op = op = parts[0]
        ops = [o.strip() for o in re.sub(r"op_sel\S*", "", parts[1]).split(",")] if len(parts) > 1 else []
        base = re.sub(r"_(e32|e64|sdwa|dpp)$", "", op)
        self.base = base
        self.dpp = bool(re.search(r"row_|quad_perm|wave_", t))
        R = [regs_of(o) for o in ops]
        allr = [r for x in R for r in x]
        if op == "WAITVM":
            self.kind = "pseudo"
            self.arg = parts[1].strip()
        elif op == "WAITLG":
            self.kind = "pseudo"
            self.arg = None
            self.rd = set(allr)
        elif op.startswith("v_mfma"):
            self.kind = "mfma"
            self.passes = 8 if "32x32" in op else 4
            self.wr = set(R[0]); self.srcab = set(R[1] + R[2]); self.srcc = set(R[3])
            self.rd = self.srcab | self.srcc
        elif op.startswith("v_"):
            self.kind = "trans" if base in TRANS else "valu"
            if base.startswith("v_permlane"):
                self.wr = set(allr); self.rd = set(allr)
            elif base in ("v_add_co_u32", "v_addc_co_u32", "v_sub_co_u32", "v_mad_u64_u32"):
                self.wr = set(R[0] + R[1]); self.rd = set(r for x in R[2:] for r in x)
            else:
                self.wr = set(R[0]); self.rd = set(r for x in R[1:] for r in x)
                if base in ("v_fmac_f32", "v_dot2c_f32_bf16", "v_writelane_b32") or self.dpp:
                    self.rd |= self.wr
            if base == "v_nop":
                self.wr = set(); self.rd = set()
        elif op.startswith("ds_"):
            self.kind = "ds"
            if "read" in op or "permute" in op or "swizzle" in op:
                self.wr = set(R[0]); self.rd = set(r for x in R[1:] for r in x)
            else:
                self.rd = set(allr)
        elif op.startswith("buffer_") or op.startswith("global_"):
            self.kind = "vmem"
            self.lds = bool(re.search(r"\blds\b", t)) or "_lds_" in op
            if op in ("buffer_inv", "buffer_wbl2"):
                pass
            elif self.lds:
                self.rd = set(allr) | {("m0", 0)}
            elif "load" in op:
                self.wr = set(R[0]); self.rd = set(r for x in R[1:] for r in x)
            elif "atomic" in op:
                self.rd = set(allr)
                if "sc0" in t:
                    self.wr = set(R[0])
            else:
                self.rd = set(allr)
                if "x4" in op or "x3" in op:
                    self.data = set(R[0] if op.startswith("buffer_") else R[1])
        elif op == "s_waitcnt":
            self.kind = "wait"
            m = re.search(r"vmcnt\((\d+)\)", t); self.vm = int(m.group(1)) if m else None
            m = re.search(r"lgkmcnt\((\d+)\)", t); self.lg = int(m.group(1)) if m else None
        elif op == "s_barrier":
            self.kind = "barrier"
        elif op == "s_nop":
            self.kind = "nop"; self.n = int(ops[0]) + 1
        elif op.startswith("s_cbranch") or op in ("s_branch", "s_endpgm", "s_setprio", "s_sleep"):
            self.kind = "branch"
        elif op.startswith("s_load") or op.startswith("s_mem") or op.startswith("s_buffer_load"):
            self.kind = "smem"
            self.wr = set(R[0]); self.rd = set(r for x in R[1:] for r in x)
        elif op.startswith("s_"):
            self.kind = "salu"
            if op.startswith("s_cmp") or op.startswith("s_bitcmp"):
                self.rd = set(allr)
            else:
                self.wr = set(R[0]); self.rd = set(r for x in R[1:] for r in x)
                if "saveexec" in op:
                    self.wr.add(("exec", 0))
        else:
            raise ValueError("unknown instruction: " + t)

    def isvalu(self):
        return self.kind in ("valu", "trans")

    def __repr__(self):
        return self.text


class Block:
    def __init__(self, name=""):
        self.name = name
        self.ins = []

    def __call__(self, text, tag=None):
        for line in text.strip().split("\n"):
            line = line.strip()
            if line and not line.startswith(";"):
                self.ins.append(Ins(line, tag))
        return self

    def add(self, x):
        if isinstance(x, Ins):
            self.ins.append(x)
        elif isinstance(x, str):
            self(x)
        else:
            for y in x:
                self.add(y)
        return self

    def text(self):
        out = []
        for i in self.ins:
            assert i.kind != "pseudo", i.text
            out.append(i.text if i.kind == "label" else "  " + i.text)
        return "\n".join(out) + "\n"


def insert_waits(traces):
    need = {}
    for _round in range(2):
        for trace in traces:
            seq = [(b, k) for b in trace for k in range(len(b.ins))]
            q = {"lg": [], "vm": []}
            done = {"lg": 0, "vm": 0}
            head = None
            for pos, (b, k) in enumerate(seq):
                i = b.ins[k]
                w = need.get((id(b), k))
                if w:
                    for c in ("lg", "vm"):
                        if w.get(c) is not None:
                            done[c] = max(done[c], len(q[c]) - w[c])
                if i.kind == "wait":
                    if i.vm is not None: done["vm"] = max(done["vm"], len(q["vm"]) - i.vm)
                    if i.lg is not None: done["lg"] = max(done["lg"], len(q["lg"]) - i.lg)
                    continue
                if i.kind == "pseudo" and i.arg is not None:
                    tags = i.arg.split()
                    last = max([n for n, (o, _) in enumerate(q["vm"]) if o.tag in tags], default=-1)
                    if last >= done["vm"]:
                        n = len(q["vm"]) - 1 - last
                        e = need.setdefault((id(b), k), {})
                        e["vm"] = min(e.get("vm", 63), n, 63)
                        done["vm"] = max(done["vm"], len(q["vm"]) - e["vm"])
                    continue
                touched = i.rd | i.wr
                for c in ("lg", "vm"):
                    last = -1
                    for n in range(done[c], len(q[c])):
                        o = q[c][n][0]
                        hit = o.wr & touched
                        if hit and (o.wr & i.rd or not (o.kind == i.kind and i.kind in ("ds", "vmem"))):
                            last = n
                    if last < 0:
                        continue
                    if q[c][last][0].kind == "smem" or any(o.kind == "smem" for o, _ in q[c][done[c]:]):
                        raise AssertionError("scalar load consumed without explicit wait: " + i.text)
                    at, cnt = (b, k), len(q[c])
                    if i.kind == "mfma" and head is not None and q[c][last][1] < head[0] and head[1][0] is b:
                        at = head[1]
                        cnt = sum(1 for _, p in q[c] if p < head[0])
                    n = cnt - 1 - last
                    cap = 15 if c == "lg" else 63
                    e = need.setdefault((id(at[0]), at[1]), {})
                    e[c] = min(e.get(c, cap), n, cap)
                    done[c] = max(done[c], cnt - e[c])
                if i.kind in ("ds", "smem"):
                    q["lg"].append((i, pos))
                elif i.kind == "vmem":
                    q["vm"].append((i, pos))
                    assert len(q["vm"]) - done["vm"] <= 63 or True
                if i.kind == "mfma":
                    head = (pos + 1, (b, k + 1))
                elif i.kind in ("barrier", "label", "branch"):
                    head = None
    blocks = {id(b): b for t in traces for b in t}
    for bid, b in blocks.items():
        new = []
        for k in range(len(b.ins) + 1):
            w = need.get((bid, k))
            if w:
                s = "s_waitcnt"
                if w.get("vm") is not None: s += f" vmcnt({w['vm']})"
                if w.get("lg") is not None: s += f" lgkmcnt({w['lg']})"
                new.append(Ins(s))
            if k < len(b.ins) and b.ins[k].kind != "pseudo":
                new.append(b.ins[k])
        merged = []
        for i in new:
            if i.kind == "wait" and merged and merged[-1].kind == "wait":
                p = merged[-1]
                vm = min([x for x in (p.vm, i.vm) if x is not None], default=None)
                lg = min([x for x in (p.lg, i.lg) if x is not None], default=None)
                s = "s_waitcnt" + (f" vmcnt({vm})" if vm is not None else "") + (f" lgkmcnt({lg})" if lg is not None else "")
                merged[-1] = Ins(s)
            else:
                merged.append(i)
        b.ins = merged


def _vec(regs):
    return {r for r in regs if r[0] in ("v", "a")}


def _sc(regs):
    return {r for r in regs if r[0] in ("s", "vcc")}


def hazard(p, c):
    n = 0
    if p.isvalu():
        wv = _vec(p.wr)
        if c.kind == "mfma" and wv & c.rd: n = max(n, 2)
        if c.isvalu():
            if p.kind == "trans" and c.kind != "trans" and wv & c.rd: n = max(n, 1)
            if c.base in ("v_readfirstlane_b32", "v_readlane_b32") and wv & c.rd: n = max(n, 1)
            if (c.base.startswith("v_permlane") or c.dpp) and wv & c.rd: n = max(n, 2)
            if _sc(p.wr) & c.rd: n = max(n, 4 if c.base in ("v_readlane_b32", "v_writelane_b32") else 2)
            if "sdwa" in p.op and wv & (c.rd | c.wr): n = max(n, 1)
        if c.kind == "vmem" and _sc(p.wr) & c.rd: n = max(n, 5)
        if c.kind in ("salu", "branch") and _sc(p.wr) & c.rd: n = max(n, 1)
    if p.kind == "mfma":
        f = {4: (6, 8, 3), 8: (10, 12, 7)}[p.passes]
        if c.kind == "mfma":
            if p.wr & c.srcab: n = max(n, f[1])
            if p.wr & c.srcc and (p.wr != c.srcc or p.passes != c.passes): n = max(n, f[0])
            if p.wr & c.wr and p.wr != c.srcc: n = max(n, f[0])
        elif c.isvalu() or c.kind in ("vmem", "ds"):
            if p.wr & (c.rd | c.wr): n = max(n, f[1])
            if p.srcc & c.wr: n = max(n, f[2])
    if p.kind == "salu" and ("m0", 0) in p.wr and c.kind == "vmem" and ("m0", 0) in c.rd: n = max(n, 1)
    if p.kind == "vmem" and p.data and p.data & c.wr: n = max(n, 2)
    return n


def pad_hazards(traces, verbose=False):
    total = 0
    for _round in range(3):
        pads = {}
        for trace in traces:
            seq = [(b, k) for b in trace for k in range(len(b.ins)) if b.ins[k].kind != "label"]
            for pos, (b, k) in enumerate(seq):
                c = b.ins[k]
                dist = 0
                for back in range(pos - 1, max(pos - 14, -1), -1):
                    p = seq[back][0].ins[seq[back][1]]
                    h = hazard(p, c)
                    if h > dist:
                        key = (id(b), k)
                        if h - dist > pads.get(key, (0,))[0]:
                            pads[key] = (h - dist, p.text)
                    dist += p.n if p.kind == "nop" else 1
                    dist += pads.get((id(seq[back][0]), seq[back][1]), (0,))[0]
                    if dist >= 13:
                        break
        if not pads:
            break
        blocks = {id(b): b for t in traces for b in t}
        for bid, b in blocks.items():
            new = []
            for k, i in enumerate(b.ins):
                if (bid, k) in pads:
                    n = pads[(bid, k)][0]
                    total += n
                    if verbose:
                        print(f"pad {n} in {b.name}: {pads[(bid, k)][1]}  ->  {i.text}")
                    new.append(Ins(f"s_nop {n - 1}"))
                new.append(i)
            b.ins = new
    return total


def estimate(block):
    cyc, gap, free, nm, over = 0, None, False, 0, []
    span = 0
    prev = None
    for i in block.ins:
        if i.kind == "label":
            continue
        if i.kind == "mfma":
            if gap is not None:
                cyc += max(span, 8 + gap)
                if 8 + gap > span: over.append((nm, 8 + gap - span))
            gap, free, span = 0, True, i.passes * 4
            nm += 1
        else:
            c = 8 if i.kind == "trans" else (4 * i.n if i.kind == "nop" else 4)
            if i.kind == "vmem": c = 8
            if i.kind in ("ds", "vmem") and prev is not None and prev.isvalu(): c += 8
            if free and i.kind in ("salu", "wait", "nop", "branch", "barrier"): c -= 4
            free = False
            if gap is None: cyc += c
            else: gap += c
        prev = i
    if gap is not None:
        cyc += max(span, 8 + gap)
    return cyc, nm, over
```

```python
import math
import struct
from isa import *
from sched import *
from common import *
from k_ln import srd

MF = "v_mfma_f32_16x16x32_bf16"
LOG2E = math.log2(math.e)
QSCALE = LOG2E * DH ** -0.5
SAFE_L = 2.0 ** 40
SPIN_MAX = 200000
TUNE = dict(hsig=2, ssig=11, gsig=6, ost0=200, ost1=500, rot=1, touchw=1, qstep=5, xlat=75, qhid=5)
KNAME = NAME + '_kernel'

WS, WQ, WG, WU, SK, SV, WT, WD, SX, DB = 4, 8, 12, 16, 20, 24, 28, 32, 36, 84
SO = SK
sAy, sAs, sWy, sWs, sM3, sFL, sFHp, sFHc, sFY, sFS, sRecv, sPar, sPhi, sOut, sBq, sW0 = range(40, 56)
(sJ, sW, sRB, sX0, sX, sWa, sMQ, sMG, sMT2, sH, sH2, sMK, sMV, sKo, sVo, sCnt, sC, sT0, sT1, sT2, sT3, sMT, sO,
 sRetry, sColG, sColT) = range(56, 82)
sPC, sOp, sSend = 82, 92, 94
sA, sWc, sSpin, sST = 88, 89, 90, 91
sHb, sHt, sTs, sTd, sTstep = 97, 98, 99, 100, 101
sROT = (sH, sH2, sA, sWc, sCnt, sT3)
sXa, sXb, sMX, sXN = sJ, sRB, sC, sT2
vXA = 1
vDQ, vTQ = 3, 6
vDG, vDT, vTG, vTT = 14, 17, 20, 3
vDK, vDV, vRK, vRV, vTL, vTR, vL16 = 28, 32, 34, 38, 46, 48, 50
vA3, vW3, vB3, vO3, vL8 = 28, 36, 45, 7, 12
vTMP, vONE, vF, vPC, vPD = 52, 58, 59, 60, 62
vTW = 63
vDX, vRX, vCS, vCW, vCR, vLNW, vXN, vSTA = 52, 56, 248, 250, 251, 252, 253, 254
vLN, vLU, vSTAT, vCSR = 192, 202, 192, 208
aCF, aCA, aCO, aXN = 0, 24, 32, 36
ACC = (64, 128)
vAF, vP, T0 = 224, 192, 248
aO, aL, aONE, aK, aV, aT = 0, 128, 144, 160, 192, 224
ACS, ACY, vSEND, vXI = 136, 64, 208, 244
L_K, L_V, L_WQ, L_WG, L_T, L_FLAG = 0, 81920, 32768, 0, 147456, 155648
L_P3 = (110592, 73728, 0)
L_IMG, L_CS = 0, 156160
LDS_BYTES = 163840
XB_GEMM = 64 * 4 * 3 * 12288
NST, NS1 = 17, 8


def f2u(x):
    return "0x%08x" % struct.unpack("<I", struct.pack("<f", x))[0]


def r4(f, n):
    return f"{f}[{n}:{n+3}]"


def qreg(qb, kk):
    return 64 + (kk * 4 + qb) * 8


def hole(i):
    return 68 + 8 * i


def sreg(kb, qb):
    return hole((kb % 2) * 4 + qb)


def negreg(qb):
    return hole(8 + qb)


vLS = hole(12)


def xq_reg(ks, qb):
    return r4("a", 64 + ((ks + 6) % 12) * 16 + qb * 4)


_early = [("a", r) for r in list(range(160, 192, 4)) + list(range(224, 256, 4)) + [148, 152, 156]]
_late = [("a", r) for r in list(range(192, 224, 4)) + [144] + list(range(128, 144, 4)) + list(range(0, 128, 4))]
_L01 = [("v", r) for r in range(192, 224, 4)] + _early[13:] + _late[1::2]
_L23 = _early[:13] + _late[0::2]
assert len(_L01) == 36 and len(_L23) == 36


def xg_reg(ks, qb):
    return r4(*(_L01 if qb < 2 else _L23)[ks * 2 + qb % 2])


def p3x(s, i):
    return r4(*_L23[(s % 3) * 8 + i])


def p3w(G, m):
    return r4(*_L23[24 + (G % 3) * 4 + m])


OPK = [ACC[1] + qb * 16 + 8 for qb in range(4)] + [ACC[1] + qb * 16 + 12 for qb in range(4)] + [28, 32, 36, 40, 44, 52, 248, 252]


def vslot(s):
    return ((s + 3) % 4) * 16384


def stamp(b, n):
    b(f"s_memtime s[0:1]\ns_memrealtime s[{sPC}:{sPC+1}]\ns_waitcnt lgkmcnt(0)")
    if n == 0:
        b("v_mov_b32 v51, 0")
    b(f"v_writelane_b32 v51, s0, {2*n}\nv_writelane_b32 v51, s{sPC}, {2*n+1}")


def stamp_ins(n):
    t = Block()
    stamp(t, n)
    return t.ins


def stamp_flush(b):
    b(f"""s_lshl_b32 s3, s2, 8
    s_add_u32 s3, s3, {WS_DBG:#x}
    v_lshlrev_b32 v52, 2, v0
    v_cmp_gt_u32 vcc, 64, v0
    s_and_saveexec_b64 s[0:1], vcc
    s_cbranch_execz att_nostamp
    buffer_store_dword v51, v52, s[{WS}:{WS+3}], s3 offen
    att_nostamp:
    s_mov_b64 exec, -1""")


def code_prefetch(step=None):
    out = []
    if step:
        out += [f"v_add_co_u32 v{vPC}, vcc, {step:#x}, v{vPC}", f"v_addc_co_u32 v{vPC+1}, vcc, 0, v{vPC+1}, vcc"]
    return out + [f"global_load_dword v{vPD}, v[{vPC}:{vPC+1}], off"]


tL, tC, tRow, tG1, tKey, tG, tA, tZ = range(T0, T0 + 8)


def setup(b):
    b(f"""{KNAME}:
    s_cmp_ge_u32 s2, 256
    s_cbranch_scc1 att_end
    s_load_dwordx2 s[{SX}:{SX+1}], s[0:1], {ARG['x']}
    s_load_dwordx4 s[40:43], s[0:1], {ARG['k']}
    s_load_dwordx4 s[44:47], s[0:1], {ARG['wq']}
    s_load_dwordx4 s[48:51], s[0:1], {ARG['wg']}
    s_load_dwordx2 s[52:53], s[0:1], {ARG['wd']}
    s_load_dwordx2 s[54:55], s[0:1], {ARG['ws']}
    s_load_dwordx2 s[{sOp}:{sOp+1}], s[0:1], {ARG['out']}
    s_load_dwordx2 s[{DB}:{DB+1}], s[0:1], {ARG['dbg']}
    s_getpc_b64 s[{sPC}:{sPC+1}]
    v_lshlrev_b32 v{tA}, 5, v0
    v_mov_b32 v{vPC+1}, s{sPC+1}
    v_add_co_u32 v{vPC}, vcc, s{sPC}, v{tA}
    v_lshrrev_b32 v{tZ}, 6, v0
    v_and_b32 v{tL}, 63, v0
    v_addc_co_u32 v{vPC+1}, vcc, 0, v{vPC+1}, vcc
    global_load_dword v{vPD}, v[{vPC}:{vPC+1}], off
    s_and_b32 s{sJ}, s2, 31
    v_readfirstlane_b32 s{sW}, v{tZ}
    v_lshlrev_b32 v{vL16}, 4, v{tL}
    s_lshr_b32 s{sT0}, s2, 5
    s_lshl_b32 s{sRB}, s{sT0}, 2
    s_add_u32 s{sRB}, s{sRB}, s{sW}
    v_lshrrev_b32 v{tA}, 5, v0
    v_mul_u32_u24 v{tA}, {2*D}, v{tA}
    v_and_b32 v{tZ}, 31, v0
    v_lshl_add_u32 v{vLU}, v{tZ}, 2, v{tA}
    s_mul_i32 s{sX}, s2, {8*2*D}""")
    b(f"""v_lshrrev_b32 v{tG}, 4, v{tL}
    v_and_b32 v{tKey}, 15, v{tL}
    s_mul_i32 s{sT2}, s{sW}, 24
    v_add_u32 v{tA}, s{sT2}, v{tG}
    v_lshlrev_b32 v{tZ}, 2, v{tG}
    v_xor_b32 v{tZ}, v{tZ}, v{tKey}
    v_lshlrev_b32 v{tZ}, 4, v{tZ}
    v_lshl_add_u32 v{vDQ}, v{tA}, 13, v{tZ}
    v_add_u32 v{vDQ+1}, {4*8192-1024}, v{vDQ}
    v_add_u32 v{vDQ+2}, {2*(4*8192-1024)}, v{vDQ}
    v_lshrrev_b32 v{tA}, 3, v{tL}
    v_mul_u32_u24 v{tA}, {2*D}, v{tA}
    v_and_b32 v{tZ}, 7, v{tL}
    v_xor_b32 v{tZ}, v{tZ}, v{tG}
    v_lshl_add_u32 v{vDX}, v{tZ}, 4, v{tA}
    v_xor_b32 v{tZ}, 4, v{tZ}
    v_lshl_add_u32 v{vDX+1}, v{tZ}, 4, v{tA}
    v_add_u32 v{vDX+1}, {8*2*D-1024}, v{vDX+1}
    v_add_u32 v{vDX+2}, {2*(8*2*D-1024)}, v{vDX}
    v_add_u32 v{vDX+3}, {2*(8*2*D-1024)}, v{vDX+1}
    s_mul_i32 s{sT1}, s{sT0}, 86
    s_lshr_b32 s{sT1}, s{sT1}, 8
    s_mul_i32 s{sT1}, s{sT1}, 3
    s_sub_u32 s{sT0}, s{sT0}, s{sT1}
    s_mul_i32 s{sROT[0]}, s{sT0}, {24576 * TUNE['rot']}
    s_mul_i32 s{sMG}, s{sW}, 6144
    s_add_u32 s{sMQ}, s{sMG}, {L_WQ}
    s_lshl_b32 s{sColG}, s{sJ}, 8
    s_lshl_b32 s{sMX}, s{sW}, 14
    s_add_u32 s{sMX}, s{sMX}, 90112
    s_cmp_eq_u32 s{sW}, 0
    s_cselect_b32 s{sMX}, 16384, s{sMX}
    s_lshl_b32 s{sKo}, s{sRB}, 1
    s_and_b32 s{sT0}, s{sJ}, 1
    s_add_u32 s{sKo}, s{sKo}, s{sT0}
    s_xor_b32 s{sVo}, s{sKo}, 1
    s_mul_i32 s{sKo}, s{sKo}, {32*2*D}
    s_mul_i32 s{sVo}, s{sVo}, {32*2*D}
    s_waitcnt lgkmcnt(0)
    s_and_b32 s{SX+1}, s{SX+1}, 0xffff
    s_mov_b32 s{SX+2}, {S*D*2:#x}
    s_mov_b32 s{SX+3}, 0x20000""")
    for i in range(9):
        b(f"buffer_load_dword v{vLN+i}, v{vLU}, s[{SX}:{SX+3}], s{sX} offen offset:{128*i}")
    srd(b, WQ, 44, D * H * DH * 2)


def setup2(b):
    srd(b, WS, 54, WS_BYTES)
    b(f"""s_and_b32 s{DB+1}, s{DB+1}, 0xffff
    s_mov_b32 s{DB+2}, 256
    s_mov_b32 s{DB+3}, 0x20000
    s_and_b32 s{sT0}, s{sJ}, 1
    s_lshl_b32 s{sT0}, s{sT0}, 11
    s_xor_b32 s{sT1}, s{sT0}, 2048
    v_add_u32 v{vXA}, s{sT0}, v{vL16}
    v_add_u32 v{vXA+1}, s{sT1}, v{vL16}
    s_mul_i32 s{sX0}, s{sRB}, {18*4096}
    s_add_u32 s{sX0}, s{sX0}, {WS_XN}""")
    srd(b, WG, 48, D * F * 2)
    srd(b, WU, 50, D * F * 2)
    b(f"""s_lshl_b32 s{sT1}, s{sJ}, 19
    s_add_u32 s40, s40, s{sT1}
    s_addc_u32 s41, s41, 0
    s_add_u32 s42, s42, s{sT1}
    s_addc_u32 s43, s43, 0""")
    srd(b, SK, 40, S * DH * 2)
    srd(b, SV, 42, S * DH * 2)
    b(f"""v_and_b32 v{tC}, 3, v{tL}
    v_lshrrev_b32 v{tRow}, 2, v{tL}
    v_and_b32 v{tG1}, 1, v{tG}
    v_and_b32 v{tZ}, 3, v{tRow}
    v_lshl_add_u32 v{tA}, v{tG}, 3, v{tZ}
    v_lshlrev_b32 v{tA}, 8, v{tA}
    v_lshl_add_u32 v{tA}, v{tC}, 4, v{tA}
    v_lshl_add_u32 v{tA}, v{tZ}, 6, v{tA}
    v_add_u32 v{vTQ}, {L_WQ}, v{tA}
    v_lshrrev_b32 v{tZ}, 1, v{tKey}
    v_xor_b32 v{tZ}, v{tZ}, v{tG}
    v_lshlrev_b32 v{tZ}, 4, v{tZ}
    v_lshl_add_u32 v{tZ}, v{tKey}, 7, v{tZ}
    v_add_u32 v{vRX}, s{sMX}, v{tZ}
    v_xor_b32 v{vRX+1}, 64, v{vRX}""")
    for kk in range(1, 4):
        b(f"v_xor_b32 v{vTQ+kk}, {64*kk}, v{vTQ}")
    for kk in range(4):
        b(f"v_add_u32 v{vTQ+4+kk}, 49152, v{vTQ+kk}")
    b(f"""s_mul_i32 s{sT2}, s{sW}, 48
    v_lshrrev_b32 v{tA}, 3, v{tL}
    v_add_u32 v{tA}, s{sT2}, v{tA}
    v_mul_u32_u24 v{tA}, {2*F}, v{tA}
    v_lshlrev_b32 v{tZ}, 1, v{tG}
    v_and_b32 v{vDG}, 7, v{tL}
    v_xor_b32 v{tZ}, v{tZ}, v{vDG}
    v_lshl_add_u32 v{vDG}, v{tZ}, 4, v{tA}
    v_add_u32 v{vDG+1}, {8*2*F-1024}, v{vDG}
    v_add_u32 v{vDG+2}, {2*(8*2*F-1024)}, v{vDG}
    v_lshlrev_b32 v{tA}, 7, v{tRow}
    v_bfe_u32 v{tZ}, v{tL}, 3, 2
    v_lshl_add_u32 v{tA}, v{tZ}, 5, v{tA}
    v_lshl_add_u32 v{vTG}, v{tC}, 3, v{tA}""")
    for n in range(1, 4):
        b(f"v_xor_b32 v{vTG+n}, {32*n}, v{vTG}")
    for n in range(4):
        b(f"v_add_u32 v{vTG+4+n}, 49152, v{vTG+n}")
    b(f"""v_add_u32 v{tA}, s{sT2}, v{tRow}
    v_mul_u32_u24 v{tA}, {2*F}, v{tA}
    v_lshlrev_b32 v{tZ}, 1, v{tG1}
    v_xor_b32 v{tZ}, v{tZ}, v{tC}
    v_lshl_add_u32 v{vDT}, v{tZ}, 4, v{tA}
    v_add_u32 v{vDT+1}, {16*2*F-1024}, v{vDT}
    v_add_u32 v{vDT+2}, {2*(16*2*F-1024)}, v{vDT}
    v_mul_u32_u24 v{tA}, {2*D}, v{tRow}
    v_lshl_add_u32 v{vTL}, v{tZ}, 4, v{tA}
    v_add_u32 v{vTL+1}, {16*2*D-1024}, v{vTL}
    s_mul_i32 s{sMT2}, s{sW}, 3072
    s_lshr_b32 s{sT0}, s{sJ}, 1
    s_lshl_b32 s{sColT}, s{sT0}, 6
    s_add_u32 s{sColT}, s{sColT}, 8192
    s_lshl_b32 s{sT1}, s2, 2
    s_add_u32 s{sT1}, s{sT1}, s{sW}
    s_sub_u32 s{sT2}, s{sT1}, 468
    s_cmp_lt_u32 s{sT1}, 468
    s_cselect_b32 s{WT}, s46, s52
    s_cselect_b32 s{WT+1}, s47, s53
    s_cselect_b32 s{WT+2}, {H*DH*D*2:#x}, s{WG+2}
    s_cselect_b32 s{sTstep}, 26, 29
    s_cselect_b32 s{sTd}, 0, {H*DH*D*2:#x}
    s_cselect_b32 s{sT1}, s{sT1}, s{sT2}
    s_and_b32 s{WT+1}, s{WT+1}, 0xffff
    s_mov_b32 s{WT+3}, 0x20000
    s_mul_i32 s{sTstep}, s{sTstep}, 36864
    s_add_u32 s{sTd}, s{sTd}, {WS_WT:#x}
    s_add_u32 s{WD}, s54, s{sTd}
    s_addc_u32 s{WD+1}, s55, 0
    s_and_b32 s{WD+1}, s{WD+1}, 0xffff
    s_mov_b32 s{WD+2}, s{WT+2}
    s_mov_b32 s{WD+3}, 0x20000
    s_cmp_lt_u32 s{sT1}, 522
    s_cselect_b32 s{sT1}, s{sT1}, 4000
    s_lshl_b32 s{sTd}, s{sT1}, 11
    s_mul_i32 s{sT2}, s{sT1}, 3641
    s_lshr_b32 s{sT2}, s{sT2}, 16
    s_mul_i32 s{sTs}, s{sT2}, 18
    s_sub_u32 s{sT1}, s{sT1}, s{sTs}
    s_lshl_b32 s{sT1}, s{sT1}, 6
    s_mul_i32 s{sTs}, s{sT2}, 36864
    s_add_u32 s{sTs}, s{sTs}, s{sT1}
    s_lshl_b32 s{sMT}, s{sW}, 11
    s_add_u32 s{sMT}, s{sMT}, {L_T}
    s_mul_i32 s{sHb}, s{sRB}, {144*4096}
    s_add_u32 s{sHb}, s{sHb}, {WS_HF:#x}
    s_add_u32 s{sT0}, s{sT0}, 128
    s_lshl_b32 s{sT0}, s{sT0}, 12
    s_add_u32 s{sHt}, s{sHb}, s{sT0}
    s_lshl_b32 s{sT0}, s{sJ}, 14
    s_add_u32 s{sHb}, s{sHb}, s{sT0}
    s_mul_i32 s{sO}, s{sRB}, {OF_STRIDE}
    s_add_u32 s{sO}, s{sO}, s{sT0}
    s_add_u32 s{sO}, s{sO}, {WS_OF:#x}
    s_lshl_b32 s{sMK}, s{sW}, 12
    s_add_u32 s{sMV}, s{sMK}, {L_V}
    s_mov_b32 s{sRetry}, 0
    v_lshlrev_b32 v{tA}, 6, v{tRow}
    v_lshl_add_u32 v{tA}, v{tC}, 3, v{tA}
    v_lshl_add_u32 v{tA}, v{tG1}, 5, v{tA}
    v_add_u32 v{vTR}, s{sMT}, v{tA}
    v_xor_b32 v{vTR+1}, 32, v{vTR}
    v_lshlrev_b32 v{tA}, 8, v{tG}
    v_add_u32 v{tA}, s{sMK}, v{tA}""")
    for i in range(4):
        b(f"""v_add_u32 v{tZ}, {4*i}, v{tG}
        v_xor_b32 v{tZ}, v{tZ}, v{tKey}
        v_lshl_add_u32 v{vDK+i}, v{tZ}, 4, v{tA}""")
    for i in range(2):
        b(f"""v_add_u32 v{tZ}, {4*i}, v{tG}
        v_lshlrev_b32 v{tZ}, 1, v{tZ}
        v_xor_b32 v{tZ}, v{tZ}, v{tKey}
        v_lshl_add_u32 v{vDV+i}, v{tZ}, 4, v{tA}""")
    b(f"v_lshlrev_b32 v{tA}, 8, v{tKey}")
    for kk in range(4):
        b(f"""v_add_u32 v{tZ}, {4*kk}, v{tG}
        v_xor_b32 v{tZ}, v{tZ}, v{tKey}
        v_lshl_add_u32 v{vRK+kk}, v{tZ}, 4, v{tA}""")
    b(f"""v_lshlrev_b32 v{tA}, 8, v{tRow}
    v_lshl_add_u32 v{tA}, v{tC}, 3, v{tA}
    v_add_u32 v{tA}, {L_V}, v{tA}
    v_and_b32 v{tZ}, 7, v{tRow}
    v_lshl_add_u32 v{vRV}, v{tZ}, 5, v{tA}""")
    for dt in range(1, 8):
        b(f"v_xor_b32 v{vRV+dt}, {32*dt}, v{vRV}")
    b(f"v_mov_b32 v{tA}, {L_FLAG}\nv_mov_b32 v{tZ}, 0\nds_write_b32 v{tA}, v{tZ}")
    b(f"""v_min_u32 v{tA}, 8, v{tL}
    v_mul_u32_u24 v{tZ}, 86, v{tA}
    v_lshrrev_b32 v{tZ}, 8, v{tZ}
    v_mul_u32_u24 v{tC}, 3, v{tZ}
    v_sub_u32 v{tA}, v{tA}, v{tC}
    s_mul_i32 s{sT0}, s{sRB}, 18
    v_add_u32 v{tZ}, s{sT0}, v{tZ}
    v_mul_u32_u24 v{tZ}, {2*F}, v{tZ}
    v_lshlrev_b32 v{tC}, 7, v{tA}
    v_add_u32 v{tC}, s{sColG}, v{tC}
    v_cmp_eq_u32 vcc, 2, v{tA}
    v_mov_b32 v{tA}, s{sColT}
    v_cndmask_b32 v{tC}, v{tC}, v{tA}, vcc
    v_add_u32 v{vTW}, v{tZ}, v{tC}""")
    p, rb, cb, t = sT0, sT1, sT2, sT3
    b(f"""s_and_b32 s{p}, s2, 3
    s_bfe_u32 s{rb}, s2, 0x10002
    s_lshl_b32 s{rb}, s{rb}, 3
    s_lshr_b32 s{t}, s2, 5
    s_add_u32 s{rb}, s{rb}, s{t}
    s_bfe_u32 s{cb}, s2, 0x20003
    s_and_b32 s{sPar}, s{p}, 1
    s_lshr_b32 s{sPhi}, s{p}, 1
    s_lshl_b32 s{sFHp}, s{t}, 7
    s_add_u32 s{sFHp}, s{sFHp}, {WS_FLAG + 128:#x}
    s_lshr_b32 s{sFHc}, s{rb}, 1
    s_lshl_b32 s{sFHc}, s{sFHc}, 7
    s_add_u32 s{sFHc}, s{sFHc}, {WS_FLAG + 128:#x}
    s_lshl_b32 s{sFL}, s{t}, 5
    s_mov_b32 s{sW0}, s{sW}
    s_lshl_b32 s{t}, s{rb}, 2
    s_add_u32 s{t}, s{t}, s{cb}
    s_lshl_b32 s{sFY}, s{t}, 7
    s_add_u32 s{sFS}, s{sFY}, {WS_FLAG + 128*128:#x}
    s_add_u32 s{sFY}, s{sFY}, {WS_FLAG + 64*128:#x}
    s_mul_i32 s{t}, s{t}, {4*3*12288}
    s_add_u32 s{t}, s{t}, s{sMT2}
    s_add_u32 s{t}, s{t}, {WS_SP:#x}
    s_mul_i32 s{sRecv}, s{p}, {3*12288}
    s_add_u32 s{sRecv}, s{sRecv}, s{t}""")
    for d in (1, 2, 3):
        b(f"""s_xor_b32 s{sSend+d-1}, s{p}, {d}
        s_mul_i32 s{sSend+d-1}, s{sSend+d-1}, {3*12288}
        s_add_u32 s{sSend+d-1}, s{sSend+d-1}, s{t}
        s_add_u32 s{sSend+d-1}, s{sSend+d-1}, {(d-1)*12288}""")
    b(f"""s_lshl_b32 s{t}, s{rb}, 1
    s_lshr_b32 s{sAy}, s{sW}, 1
    s_add_u32 s{t}, s{t}, s{sAy}
    s_mul_i32 s{sAs}, s{t}, {OF_STRIDE}
    s_lshl_b32 s{sAy}, s{p}, 17
    s_add_u32 s{sAs}, s{sAs}, s{sAy}
    s_add_u32 s{sAs}, s{sAs}, {WS_OF:#x}
    s_lshl_b32 s{t}, s{t}, 2
    s_add_u32 s{t}, s{t}, s{p}
    s_mul_i32 s{sAy}, s{t}, {36*4096}
    s_add_u32 s{sAy}, s{sAy}, {WS_HF:#x}
    s_lshl_b32 s{t}, s{sW}, 2
    s_add_u32 s{t}, s{t}, s{cb}
    s_mul_i32 s{t}, s{t}, 9216
    s_add_u32 s{t}, s{t}, {WS_WT - 4096:#x}
    s_mul_i32 s{sWs}, s{p}, {32*36864}
    s_add_u32 s{sWs}, s{sWs}, s{t}
    s_mul_i32 s{sWy}, s{p}, {36*36864}
    s_add_u32 s{sWy}, s{sWy}, s{t}
    s_add_u32 s{sWy}, s{sWy}, {128*36864}
    s_mul_i32 s{sM3}, s{sW}, 9216
    s_lshl_b32 s{sOut}, s{rb}, 3
    s_lshl_b32 s{t}, s{sW}, 1
    s_add_u32 s{sOut}, s{sOut}, s{t}
    s_add_u32 s{sOut}, s{sOut}, s{sPhi}
    s_mul_i32 s{sOut}, s{sOut}, {16*2*D}
    s_mul_i32 s{t}, s{cb}, 288
    s_add_u32 s{sOut}, s{sOut}, s{t}
    s_and_b32 s{sBq}, s{sW}, 1
    s_lshl_b32 s{sBq}, s{sBq}, 1
    s_add_u32 s{sBq}, s{sBq}, s{sPhi}
    s_lshl_b32 s{sBq}, s{sBq}, 10""")
    b(f"""s_lshl_b32 s{sST}, s{sRB}, 9
    s_add_u32 s{sST}, s{sST}, {WS_ST:#x}
    s_lshr_b32 s{sT0}, s2, 3
    s_mul_i32 s{sXN}, s{sT0}, {18*4096}
    s_bfe_u32 s{sT0}, s2, 0x20001
    s_lshl_b32 s{sT0}, s{sT0}, 10
    s_add_u32 s{sXN}, s{sXN}, s{sT0}
    s_and_b32 s{sT0}, s2, 1
    s_lshl_b32 s{sT1}, s{sT0}, 8
    s_lshl_b32 s{sT0}, s{sT0}, 7
    s_add_u32 s{sXN}, s{sXN}, s{sT0}
    s_lshl_b32 s{sT0}, s{sW}, 13
    s_add_u32 s{sXN}, s{sXN}, s{sT0}
    s_add_u32 s{sXN}, s{sXN}, {WS_XN}
    v_lshlrev_b32 v{vSTA}, 3, v{tKey}
    v_add_u32 v{vSTA}, s{sT1}, v{vSTA}
    v_xor_b32 v{vSTA+1}, 256, v{vSTA}
    v_lshlrev_b32 v{vCR}, 4, v{tG}
    v_add_u32 v{vCR}, {L_CS}, v{vCR}
    s_lshl_b32 s{sT0}, s{sW}, 7
    v_add_u32 v{vCW}, s{sT0}, v{vCR}
    v_cmp_eq_u32 vcc, 0, v{tKey}
    v_mov_b32 v{vCS+1}, {L_CS + 1024}
    v_mov_b32 v{vLNW}, 0x3f803f80
    v_cndmask_b32 v{vCW}, v{vCS+1}, v{vCW}, vcc
    v_cndmask_b32 v{vLNW}, 0, v{vLNW}, vcc
    v_bfe_u32 v{vXN}, v0, 3, 2
    v_lshlrev_b32 v{vXN}, 8, v{vXN}
    v_accvgpr_write_b32 a{aCO}, v{vLNW}
    v_accvgpr_write_b32 a{aCO+1}, v{vLNW}
    v_accvgpr_write_b32 a{aCO+2}, v{vLNW}
    v_accvgpr_write_b32 a{aCO+3}, v{vLNW}
    v_bfe_u32 v{vCS+1}, v0, 5, 1
    v_lshl_add_u32 v{vXN}, v{vCS+1}, 12, v{vXN}
    v_and_b32 v{vCS+1}, 7, v0
    v_lshl_add_u32 v{vXN}, v{vCS+1}, 4, v{vXN}
    v_bfe_u32 v{vLNW}, v0, 4, 1
    v_lshlrev_b32 v{vLNW}, 9, v{vLNW}
    v_bfe_u32 v{vCS+1}, v0, 1, 2
    v_lshl_add_u32 v{vLNW}, v{vCS+1}, 7, v{vLNW}
    v_lshrrev_b32 v{vCS+1}, 5, v0
    v_lshl_add_u32 v{vLNW}, v{vCS+1}, 4, v{vLNW}
    v_bfe_u32 v{vCS+1}, v0, 3, 1
    v_lshl_add_u32 v{vLNW}, v{vCS+1}, 3, v{vLNW}
    v_and_b32 v{vCS+1}, 1, v0
    v_lshl_add_u32 v{vLNW}, v{vCS+1}, 2, v{vLNW}
    s_lshl_b32 s{sT0}, s{sW}, 6
    v_xor_b32 v{vCS}, s{sT0}, v{vTQ}
    v_add_u32 v{vCS+1}, 49152, v{vCS}
    s_mov_b32 s{sXa}, s{sKo}
    s_mov_b32 s{sXb}, s{sVo}
    s_mov_b32 s{sKo}, 0
    s_mov_b32 s{sVo}, 0""")
    for c in range(1, 6):
        b(f"""s_add_u32 s{sROT[c]}, s{sROT[c-1]}, 12288
        s_cmp_eq_u32 s{sROT[c]}, {6*12288}
        s_cselect_b32 s{sROT[c]}, 0, s{sROT[c]}""")


class Plan:
    def __init__(self):
        self.items, self.pinned = [], {}

    def add(self, *a, **k):
        self.items.append(Item(*a, **k))

    def paced(self, ts, pos, step, tag=None, only_lds=False, space=3, slack=5):
        for t in ts:
            vm = t.startswith("buffer") or t.startswith("global")
            tg = tag if (not only_lds or " lds" in t) else None
            lead = 0 if vm else (3 if t.startswith("s_") else 8)
            self.add(t, int(pos) - lead, int(pos) + slack, tag=tg, prio=int(pos) - 20, space=space)
            pos += step * vm
        return pos

    def spread(self, ts, st, en):
        for k, t in enumerate(ts):
            self.add(t, st, en, prio=st + 16 + k * max(en - st - 26, 0) // len(ts))

    def pin(self, g, ins):
        self.pinned.setdefault(g, []).extend(ins)

    def barrier(self, g, tags):
        self.pin(g, [Ins("WAITVM " + tags), Ins("s_waitcnt lgkmcnt(0)"), Ins("s_barrier")])

    def emit(self, b, mf, stamps=()):
        gaps = schedule(len(mf), self.items, self.pinned, mfmas=mf)
        for g, ins in self.pinned.items():
            for i in ins:
                if i.kind == "pseudo":
                    for it in self.items:
                        hit = it.ins.tag in i.arg.split() and it.ins.kind == "vmem" if i.arg else (it.ins.wr & i.rd and abs(it.ready - g) < 12)
                        assert not hit or (it.gap is not None and it.gap < g), (i.text, g, it.ins.text, it.gap)
        for g, n in stamps:
            gaps[g] = gaps[g] + stamp_ins(n)
        weave(b, mf, gaps)


def x_loads(ks, reg, first=False):
    out = [f"s_mov_b32 s{sX}, s{sX0}"] if first else []
    out += [f"buffer_load_dwordx4 {reg(ks, qb)}, v{vXA + qb//2}, s[{WS}:{WS+3}], s{sX} offen offset:{(qb&1)*1024} sc1" for qb in range(4)]
    return out + [f"s_add_u32 s{sX}, s{sX}, 4096"]


def wq_dma(c):
    out = []
    for s in range(2):
        if s == 0:
            out.append(f"s_lshl_b32 s{sWa}, s{sROT[c]}, 6")
        out.append(f"s_add_u32 s{sWa}, s{sWa}, " + (f"s{sColG}" if s == 0 else f"{12*8192}"))
        out.append(f"s_add_u32 m0, s{sMQ}, {(c%3)*24576 + s*3072}")
        out += [f"buffer_load_dwordx4 v{vDQ+i}, s[{WQ}:{WQ+3}], s{sWa} offen offset:{i*1024} lds" for i in range(3)]
    return out


def kv_dma(which, slot):
    if which == "K":
        out = [f"s_add_u32 m0, s{sMK}, {L_K + slot*16384}"]
        out += [f"buffer_load_dwordx4 v{vDK+t}, s[{SK}:{SK+3}], s{sKo} offen offset:{t*1024} lds" for t in range(4)]
        out.append(f"s_add_u32 s{sKo}, s{sKo}, 16384")
    else:
        out = [f"s_add_u32 m0, s{sMV}, {vslot(slot)}"]
        out += [f"buffer_load_dwordx4 v{vDV+(t&1)}, s[{SV}:{SV+3}], s{sVo} offen offset:{t*1024} lds" for t in range(4)]
        out.append(f"s_add_u32 s{sVo}, s{sVo}, 16384")
    return out


def k_read(unit, kb, kk):
    return f"ds_read_b128 {r4('a', aK + (kb%2)*16 + kk*4)}, v{vRK+kk} offset:{L_K + (unit%4)*16384 + kb*4096}"


def v_read(unit, dt, m, half):
    r = aV + ((dt // 2) % 2) * 16 + ((dt % 2) * 2 + m) * 4 + half * 2
    return f"ds_read_b64_tr_b16 a[{r}:{r+1}], v{vRV+dt} offset:{vslot(unit%4) + m*8192 + half*4096}"


def af(gi, k):
    return vAF + (gi % 2) * 12 + k * 4


def x_dma(n, base=None):
    u, hf = divmod(n, 2)
    base = base or (sXa, sXb)
    out = [f"s_lshr_b32 s{sX}, s{sROT[u//3*2]}, 6", f"s_add_u32 s{sX}, s{sX}, s{base[hf]}"]
    if u % 3:
        out.append(f"s_add_u32 s{sX}, s{sX}, {u%3*128}")
    out.append(f"s_add_u32 m0, s{sMX}, {(n%4)*4096}")
    return out + [f"buffer_load_dwordx4 v{vDX+i}, s[{SX}:{SX+3}], s{sX} offen offset:{i*1024} lds" for i in range(4)]


def x_reads(n):
    u, hf = divmod(n, 2)
    return [f"ds_read_b128 {xq_reg(2*u+k, 2*hf+i)}, v{vRX+k} offset:{(n%4)*4096 + i*2048}" for k in range(2) for i in range(2)]


def half_reduce(b, v, t):
    for r in (8, 4, 2, 1):
        b(f"v_mov_b32_dpp v{t}, v{v} row_ror:{r} row_mask:0xf bank_mask:0xf\nv_add_f32 v{v}, v{v}, v{t}")
    b(f"v_mov_b32 v{t}, v{v}\nv_permlane16_swap_b32 v{v}, v{t}\nv_add_f32 v{v}, v{v}, v{t}")


vMU, vRS = 220, 221


def ln_stats(b):
    U, a, t = vLU, 222, 201
    for i in range(9):
        b(f"v_lshlrev_b32 v{U+2*i}, 16, v{vLN+i}\nv_and_b32 v{U+2*i+1}, 0xffff0000, v{vLN+i}")
    b(f"v_pk_add_f32 v[{a}:{a+1}], v[{U}:{U+1}], v[{U+2}:{U+3}]")
    for i in range(2, 9):
        b(f"v_pk_add_f32 v[{a}:{a+1}], v[{a}:{a+1}], v[{U+2*i}:{U+2*i+1}]")
    b(f"v_add_f32 v{vMU}, v{a}, v{a+1}")
    half_reduce(b, vMU, t)
    b(f"v_mul_f32 v{vMU}, {-1.0/D!r}, v{vMU}\nv_mov_b32 v{vMU+1}, v{vMU}")
    for i in range(9):
        d = vLN + 2 * (i % 2)
        b(f"v_pk_add_f32 v[{d}:{d+1}], v[{U+2*i}:{U+2*i+1}], v[{vMU}:{vMU+1}]")
        if i == 0:
            b(f"v_pk_mul_f32 v[{a}:{a+1}], v[{d}:{d+1}], v[{d}:{d+1}]")
        else:
            b(f"v_pk_fma_f32 v[{a}:{a+1}], v[{d}:{d+1}], v[{d}:{d+1}], v[{a}:{a+1}]")
    b(f"v_add_f32 v{vRS}, v{a}, v{a+1}")
    half_reduce(b, vRS, t)
    b(f"""v_mul_f32 v{vRS}, {1.0/D!r}, v{vRS}
    v_cvt_pk_bf16_f32 v{vMU}, v{vMU}, v{vRS}
    v_and_b32 v{vRS}, 0xffff0000, v{vMU}
    v_lshlrev_b32 v{vMU}, 16, v{vMU}
    v_add_f32 v{vRS}, 0x3727c5ac, v{vRS}
    v_cvt_pk_bf16_f32 v{vRS}, v{vRS}, v{vRS}
    v_lshlrev_b32 v{vRS}, 16, v{vRS}
    v_sqrt_f32 v{vRS}, v{vRS}
    v_lshrrev_b32 v{t}, 5, v0
    v_cvt_pk_bf16_f32 v{vRS}, v{vRS}, v{vRS}
    v_lshlrev_b32 v{vRS}, 16, v{vRS}
    v_rcp_f32 v{vRS}, v{vRS}
    v_lshlrev_b32 v{t}, 3, v{t}
    s_lshl_b32 s{sT0}, s2, 6
    s_add_u32 s{sT0}, s{sT0}, {WS_ST:#x}
    s_lshl_b32 s{sT1}, s2, 7
    s_add_u32 s{sT1}, s{sT1}, {WS_FLAG:#x}
    v_mov_b32 v{a}, 0""")
    b(f"buffer_store_dwordx2 v[{vMU}:{vMU+1}], v{t}, s[{WS}:{WS+3}], s{sT0} offen sc1", "ST")
    b(f"buffer_store_dword v{a}, off, s[{WS}:{WS+3}], s{sT1} sc1", "ST")


def phase_q(pro, b, stamps):
    pro.add([Ins(t, "W0") for t in wq_dma(0)])
    for n in range(4):
        pro.add([Ins(t, f"X{n}") for t in x_dma(n, (sKo, sVo))])
    setup2(pro)
    pro.add([Ins(t, "W1") for t in wq_dma(1)])
    ln_stats(pro)
    CH = 102
    mf, start = [], []
    for gi in range(48):
        c, t = divmod(gi, 8)
        start.append(len(mf))
        for qb in range(4):
            d = r4("v", qreg(qb, t // 2) + 4 * (t % 2))
            for k in range(3):
                mf.append(f"{MF} {d}, {r4('v', af(gi, k))}, {xq_reg(c*3+k, qb)}, {'0' if c + k == 0 else d}")
        if t == 0:
            for a2 in range(2):
                d = r4("a", aCA + 4 * a2)
                for k in range(3):
                    mf.append(f"{MF} {d}, {r4('a', aCF + a2*12 + k*4)}, {r4('a', aCO)}, {'0' if c + k == 0 else d}")
    N = len(mf)

    def woff(c, k, h):
        return 24576 * (c % 3 == 1) + k * 8192 + h * 1024

    def reads(gi):
        c, t = divmod(gi, 8)
        return [f"ds_read_b64_tr_b16 v[{af(gi,k)+2*h}:{af(gi,k)+2*h+1}], v{vTQ + 4*(c%3//2) + t//2} "
                f"offset:{woff(c, k, h) + 8*(t%2)}" for k in range(3) for h in range(2)]

    def cs_reads(c):
        return [f"ds_read_b64_tr_b16 a[{aCF+a2*12+k*4+2*h}:{aCF+a2*12+k*4+2*h+1}], v{vCS + c%3//2} offset:{woff(c, k, h) + 8*a2}"
                for a2 in range(2) for k in range(3) for h in range(2)]
    for n in range(4):
        pro(f"WAITVM X{n}")
        pro.add(x_reads(n))
    pro("WAITVM W0\ns_waitcnt lgkmcnt(0)\ns_barrier")
    if stamps: stamp(pro, 1)
    pro.add(reads(0))
    P = Plan()
    bar = [start[c * 8 + 7] - 1 for c in range(6)]
    for c in range(6):
        P.barrier(bar[c], (f"W{c+1}" if c < 5 else "K0") + (" ST" if c == 0 else ""))
    P.pin(bar[0] + 1, signal("l"))
    for gi in range(47):
        for k, t in enumerate(reads(gi + 1)):
            g = start[gi] - 1 + k + (6 if gi % 8 == 0 else 0)
            P.add(t, g, g + 2)
    for c in range(6):
        for k, t in enumerate(cs_reads(c)):
            g = (bar[c - 1] + 6 if c else -1) + (k if c else k // 2)
            P.add(t, g, g + 2)
    step, lat = TUNE["qstep"], TUNE["xlat"]
    pos, wnext = 1, 2
    freed = {n: -1 for n in range(4)}
    for n in range(4, 18):
        pos = max(pos, freed[n - 4] + 1)
        pos = P.paced(x_dma(n), pos, step, tag=f"X{n}", slack=3)
        g = int(pos - step + 3 + lat)
        first = min(start[(2 * (n // 2)) // 3 * 8] - 10, bar[4] - 8)
        g = min(g, first)
        while g in P.pinned or g + 7 in P.pinned:
            g -= 1
        assert g > pos - step + 4, (n, g, pos)
        P.pin(g, [Ins(f"WAITVM X{n}")])
        for k, t in enumerate(x_reads(n)):
            P.add(t, g + k // 2, g + 1 + k // 2)
        P.pin(g + 7, [Ins("WAITLG " + ", ".join(t.split()[1].rstrip(",") for t in x_reads(n)))])
        freed[n] = g + 7
        if n == 4:
            pos = P.paced(code_prefetch(0x2000), max(pos, 9), 3)
        if n % 3 == 2 and wnext < 6:
            pos = max(pos, bar[wnext - 3] + 4 if wnext >= 3 else 0)
            pos = P.paced(wq_dma(wnext), pos, step, tag=f"W{wnext}")
            wnext += 1
    assert wnext == 6
    pos = P.paced(kv_dma("K", 0), max(pos, bar[2] + 4), step, tag="K0")
    pos = P.paced(code_prefetch(0x2000), pos, 4)
    lchk = bar[4] - 30
    P.paced([poll_load(DB, sFL)], lchk - 60, 1)
    P.pin(lchk, poll_check("l", 32, 0xff))
    pos = P.paced([f"buffer_load_dwordx2 v[{vSTAT+2*qb}:{vSTAT+2*qb+1}], v{vSTA+qb//2}, s[{WS}:{WS+3}], s{sST} offen offset:{(qb&1)*128} sc1"
                   for qb in range(4)], max(pos, lchk + 2), 3)
    pend = P.items[-4:]
    del P.items[-4:]
    ts = []
    for i in range(9):
        a2, c2 = vLU + 2 * i, vLU + 2 * i + 1
        ts += [f"v_add_f32 v{a2}, v{a2}, v{vMU}", f"v_add_f32 v{c2}, v{c2}, v{vMU}", f"v_cvt_pk_bf16_f32 v{a2}, v{a2}, v{c2}",
               f"v_and_b32 v{c2}, 0xffff0000, v{a2}", f"v_lshlrev_b32 v{a2}, 16, v{a2}", f"v_mul_f32 v{a2}, v{a2}, v{vRS}",
               f"v_mul_f32 v{c2}, v{c2}, v{vRS}", f"v_cvt_pk_bf16_f32 v{vLN+i}, v{a2}, v{c2}",
               f"ds_write_b32 v{vLNW}, v{vLN+i} offset:{L_IMG + i*1024}"]
    P.spread(ts, 8, bar[1] - 8)
    P.add(f"v_lshlrev_b32 v{vLNW}, 4, v0", 8, bar[1])
    for i in range(3):
        P.add(f"ds_read_b128 {r4('a', aXN + 4*i)}, v{vLNW} offset:{L_IMG + i*4096}", bar[1] + 8, bar[2] - 10)
    P.items += pend
    ts = []
    for i in range(3):
        ts.append(f"buffer_store_dwordx4 {r4('a', aXN + 4*i)}, v{vXN}, s[{WS}:{WS+3}], s{sXN} offen sc1")
        if i == 0:
            ts.append(f"s_add_u32 s{sXN}, s{sXN}, 32768")
        if i == 1:
            ts += [f"s_lshl_b32 s{sT1}, s{sW}, 28", f"s_add_u32 s{sXN}, s{sXN}, s{sT1}", f"s_add_u32 s{sXN}, s{sXN}, 32768"]
    pos = P.paced(ts, pos + 2, 8, tag="XN")
    for which, slot in (("V", 0), ("K", 1)):
        pos = P.paced(kv_dma(which, slot), max(pos, bar[4] + 4), 6, tag=f"{which}{slot}")
    cdone = start[40] + 17
    for a2 in range(2):
        P.add(f"ds_write_b128 v{vCW}, {r4('a', aCA + 4*a2)} offset:{a2*64}", cdone + 3 + a2, cdone + 4 + a2)
    cbar = cdone + 8
    P.pin(cbar, [Ins("s_waitcnt lgkmcnt(0)"), Ins("s_barrier")])
    for r in list(range(48, 64)) + list(range(64, 144)) + list(range(48)):
        rdy = 2 if 48 <= r < 64 else (start[24] + 2 if 64 <= r < 112 else (start[32] + 2 if r >= 112 else cdone + 1))
        P.add(f"v_accvgpr_write_b32 a{r}, 0", rdy, None, prio=rdy + 90 if r >= 48 else N + 50)
    t1 = 222
    ones = [f"v_and_b32 v{t1}, 3, v0", f"v_cmp_eq_u32 vcc, 0, v{t1}", f"v_mov_b32 v{t1+1}, 0x3f803f80",
            f"v_cndmask_b32 v{t1}, 0, v{t1+1}, vcc"] + [f"v_accvgpr_write_b32 a{aONE+i}, v{t1}" for i in range(4)]
    for k, t in enumerate(ones):
        P.add(t, start[32] + 2 + 2 * k, start[40])
    for kk in range(4):
        P.add(k_read(0, 0, kk), bar[5], N - 2)
    for qb in range(4):
        P.add(f"v_mul_f32 v{vSTAT+2*qb+1}, {f2u(QSCALE)}, v{vSTAT+2*qb+1}", cbar - 6, cbar + 4)
    late = Block()
    for t in range(8):
        cs = vCSR + (t % 3) * 4
        P.add(f"ds_read_b128 {r4('v', cs)}, v{vCR} offset:{t*64}", cbar, None, prio=max(start[40 + t], cbar))
        for qb in range(4):
            r = qreg(qb, t // 2)
            z = r + 4 * (t % 2)
            if t < TUNE["qhid"]:
                done = max(start[40 + t] + qb * 3 + 7, cbar + 6)
                for e in range(4):
                    P.add(f"v_fmac_f32 v{z+e}, v{vSTAT+2*qb}, v{cs+e}", done, None, prio=done + 3)
                for e in range(4):
                    P.add(f"v_mul_f32 v{z+e}, v{vSTAT+2*qb+1}, v{z+e}", done, None, prio=done + 4)
                for h in range(2):
                    P.add(f"v_cvt_pk_bf16_f32 v{r+2*(t%2)+h}, v{z+2*h}, v{z+2*h+1}", done, None, prio=done + 5)
            else:
                st = f"v[{vSTAT+2*qb}:{vSTAT+2*qb+1}]"
                for h in (0, 2):
                    late(f"v_pk_fma_f32 v[{z+h}:{z+h+1}], {st}, v[{cs+h}:{cs+h+1}], v[{z+h}:{z+h+1}] op_sel_hi:[0,1,1]")
                for h in (0, 2):
                    late(f"v_pk_mul_f32 v[{z+h}:{z+h+1}], {st}, v[{z+h}:{z+h+1}] op_sel:[1,0] op_sel_hi:[1,1]")
                for h in range(2):
                    late(f"v_cvt_pk_bf16_f32 v{r+2*(t%2)+h}, v{z+2*h}, v{z+2*h+1}")
    assert TUNE["qhid"] >= 5
    P.emit(b, mf)
    b.add(late.ins)


def first_max(b):
    for qb in range(4):
        d = r4("v", sreg(0, qb))
        for kk in range(4):
            b(f"{MF} {d}, {r4('a', aK + kk*4)}, {r4('v', qreg(qb, kk))}, {'0' if kk == 0 else d}")
    b(f"""v_subrev_u32 v{vTT}, s{sMT}, v{vTR}
    v_subrev_u32 v{vTT+1}, s{sMT}, v{vTR+1}
    v_add_u32 v{vTT+2}, 49152, v{vTT}
    v_add_u32 v{vTT+3}, 49152, v{vTT+1}
    s_getpc_b64 s[{sPC}:{sPC+1}]
    att_pc2:
    s_add_u32 s{sPC}, s{sPC}, att_side-att_pc2
    s_addc_u32 s{sPC+1}, s{sPC+1}, 0
    v_lshlrev_b32 v{vPC}, 5, v0
    v_mov_b32 v{vPC+1}, s{sPC+1}
    v_add_co_u32 v{vPC}, vcc, s{sPC}, v{vPC}""")
    for qb in range(4):
        s = sreg(0, qb)
        b(f"v_max3_f32 v{vTMP+qb}, v{s}, v{s+1}, v{s+2}\nv_max_f32 v{vTMP+qb}, v{vTMP+qb}, v{s+3}")
    b(f"v_addc_co_u32 v{vPC+1}, vcc, 0, v{vPC+1}, vcc")


def finish_max(b):
    for op in ("v_permlane32_swap_b32", "v_permlane16_swap_b32"):
        for qb in range(4):
            b(f"v_mov_b32 v{vTMP+4+qb}, v{vTMP+qb}")
        for qb in range(4):
            b(f"{op} v{vTMP+qb}, v{vTMP+4+qb}")
        for qb in range(4):
            b(f"v_max_f32 v{vTMP+qb}, v{vTMP+qb}, v{vTMP+4+qb}")
    for qb in range(4):
        for i in range(4):
            b(f"v_sub_f32 v{negreg(qb)+i}, 0, v{vTMP+qb}")


class Attn:
    def __init__(self, sumq=(0, 1, 2, 3), lag=7, barback=16):
        self.sumq = sumq
        self.mk = []
        self.qk0, self.pv0 = [], []
        for i in range(4):
            self.qk0.append(len(self.mk))
            self.mk += [("qk", i, qb, kk) for qb in range(4) for kk in range(4)]
            self.pv0.append(len(self.mk))
            self.mk += [("pv", dt, qb, m) for dt in (2 * i, 2 * i + 1) for qb in range(4) for m in range(2)]
            if i in sumq:
                self.mk += [("sum", 0, i, m) for m in range(2)]
        self.G = G = len(self.mk)
        self.bar = G - barback
        NS = 6
        items, pinned = [], {}
        for u in range(NS):
            o = u * G
            pinned[o + self.bar] = [Ins("s_waitcnt vmcnt(8)"), Ins("s_barrier")]
            pinned[o + G - 1] = [Ins("s_cmp_eq_u32 s0, 0"), Ins("s_cbranch_scc1 x")]
            n = u + 1
            for kb in range(4):
                q0 = o + self.qk0[kb]
                q1 = o + (self.qk0[kb + 1] if kb < 3 else G)
                for e in range(16):
                    qb, t = divmod(e, 4)
                    g = q0 + lag + e * (q1 - q0) // 16
                    while g in pinned or (g % G) in (self.bar, G - 1):
                        g += 1
                    items.append(self.item(("exp", n, kb, qb, t), g, g))
                    if qb not in sumq:
                        items.append(self.item(("add", n, kb, qb, t), g + 1, g + 12))
                    if t % 2 == 1:
                        items.append(self.item(("cvt", n, kb, qb, t), g + 1, g + 5))
            for kb in range(4):
                use = o + self.qk0[kb]
                rdy = (o - G + self.bar) if kb < 2 else (o + self.qk0[kb - 2] + 16)
                rdy = max(rdy, use - 30)
                for kk in range(4):
                    items.append(self.item(("kr", n, kb, kk, 0), max(rdy, -1), max(use - 8 + kk, 0)))
            for dt in range(8):
                use = o + self.pv0[dt // 2] + (dt % 2) * 8
                rdy = (o - G + self.bar) if dt < 4 else (o + self.pv0[dt // 2 - 2] + 16)
                if dt in (2, 3):
                    rdy = max(rdy, o)
                rdy = max(rdy, use - 34)
                for m in range(2):
                    for half in range(2):
                        items.append(self.item(("vr", u, dt, m, half), max(rdy, 0), max(use - 8 + m, 0)))
            for wi, which in enumerate("KV"):
                for k in range(6):
                    pos = o + self.bar + 2 + (wi * 4 + min(max(k - 1, 0), 3)) * (G // 8)
                    pos += -1 if k == 0 else 0
                    items.append(self.item(("dma", u + 4 - wi, which, k, 0), pos, pos + 14))
        items = [it for it in items if not (it.key[0] == "kr" and it.key[1] == 1 and it.key[2] == 0)]
        gaps = schedule(NS * G, items, pinned, mfmas=[self.mfma(u, k) for u in range(NS) for k in self.mk])

        def pat(u):
            return [[(it.key[0], it.key[1] - u) + it.key[2:] for it in gaps[u * G + g] if isinstance(it, Item)]
                    for g in range(G)]
        assert pat(3) == pat(4), "schedule is not periodic"
        self.pat = pat(3)

    def item(self, key, ready, deadline):
        return Item(self.text(key), ready, deadline, key=key)

    def text(self, key):
        k, n = key[0], key[1]
        if k in ("exp", "add", "cvt"):
            kb, qb, t = key[2:]
            s = sreg(kb, qb) + t
            if k == "exp":
                return f"v_exp_f32 v{s}, v{s}"
            if k == "add":
                return f"v_add_f32 v{vLS+qb}, v{vLS+qb}, v{s}"
            p = vP + (n % 2) * 32 + qb * 8 + (kb // 2) * 4 + (kb % 2) * 2 + t // 2
            return f"v_cvt_pk_bf16_f32 v{p}, v{s-1}, v{s}"
        if k == "kr":
            return k_read(n, key[2], key[3])
        if k == "vr":
            return v_read(n, *key[2:])
        return kv_dma(key[2], n % 4)[key[3]]

    def mfma(self, u, key):
        k, i, qb, z = key
        if k == "qk":
            d = r4("v", sreg(i, qb))
            c = r4("v", negreg(qb)) if z == 0 else d
            return f"{MF} {d}, {r4('a', aK + (i%2)*16 + z*4)}, {r4('v', qreg(qb, z))}, {c}"
        p = r4("v", vP + (u % 2) * 32 + qb * 8 + z * 4)
        if k == "pv":
            d = r4("a", aO + (i * 4 + qb) * 4)
            return f"{MF} {d}, {r4('a', aV + ((i//2)%2)*16 + ((i%2)*2 + z)*4)}, {p}, {d}"
        d = r4("a", aL + qb * 4)
        return f"{MF} {d}, {r4('a', aONE)}, {p}, {d}"

    def valid(self, key, n, last):
        k = key[0]
        if k == "dma":
            return n >= (2 if key[2] == "K" else 1) and not last
        if k == "kr" and n == 0 and key[2] == 0:
            return False
        return 0 <= n <= 31

    def place(self, extras):
        out, g = {}, 0
        for lo, text, tag in extras:
            ins = Ins(text, tag)
            g = max(g, lo)
            while True:
                used = [Ins(self.text((k[0], 4 + k[1]) + k[2:])) for k in self.pat[g]] + out.get(g, [])
                busy = sum(cost(i) for i in used if i.kind not in ("salu", "pseudo"))
                near = any(k[0] == "dma" and 1 <= k[3] <= 4 for d in (-2, -1, 1, 2) for k in self.pat[(g + d) % self.G])
                if g in (self.bar, self.G - 1):
                    ok = False
                elif ins.kind in ("salu", "pseudo"):
                    ok = not any(i.kind in ("salu", "vmem", "pseudo") for i in used)
                elif ins.kind == "vmem":
                    ok = not used and not near
                else:
                    ok = busy <= 4
                if ok:
                    break
                g += 1
            out.setdefault(g, []).append(ins)
            g += 4 if ins.kind == "vmem" else 1
        return out

    def extras(self, u):
        vend = next(g for g in range(self.G) if ("dma", 2, "V", 4, 0) in self.pat[g])
        kset = next(g for g in range(self.G) if ("dma", 4, "K", 0, 0) in self.pat[g])
        if u % 4 == 0:
            ex = [(vend + 1, f"s_mov_b32 m0, s{sMT}", None)]
            ex += [(0, f"buffer_load_dwordx4 v{vTL+i}, s[{WT}:{WT+3}], s{sTs} offen offset:{i*1024} lds", "WT") for i in range(2)]
            out = self.place(ex + [(0, f"s_add_u32 s{sTs}, s{sTs}, s{sTstep}", None)])
            assert max(g for g, l in out.items() if any(i.kind == "vmem" for i in l)) < kset
            return out
        if u % 4 == 2:
            ex = [(40, "WAITVM WT", None)]
            ex += [(0, f"ds_read_b64_tr_b16 a[{aT+4*n+2*h}:{aT+4*n+2*h+1}], v{vTR+n} offset:{h*1024}", None)
                   for n in range(2) for h in range(2)]
            ex += [(76 + 20 * n, f"buffer_store_dwordx4 {r4('a', aT+4*n)}, v{vL16}, s[{WD}:{WD+3}], s{sTd} offen offset:{n*1024} sc1", None)
                   for n in range(2)]
            return self.place(ex + [(0, f"s_add_u32 s{sTd}, s{sTd}, s{sTstep}", None)])
        if u % 4 == 1:
            ex = [(10, code_prefetch()[0], None), (0, poll_load(DB, sFL), None)]
            if TUNE["touchw"]:
                ex += [(0, f"s_mul_i32 s{sT0}, s{sCnt}, {3*2*F}", None)]
                ex += [(0, f"buffer_load_dword v{vPD}, v{vTW}, s[{r}:{r+3}], s{sT0} offen", None) for r in (WG, WU)]
            return self.place(ex)
        return {}

    def slot(self, b, u, tail=None):
        extra = self.extras(u) if u >= 0 else {}
        for g in range(self.G):
            mk = self.mk[g]
            unit = u + 1 if mk[0] == "qk" else u
            if 0 <= unit <= 31:
                b(self.mfma(u, mk))
            if g == self.bar and u >= -1:
                b(f"WAITVM K{(u+2)%4} V{(u+1)%4}{' XN' if u == -1 else ''}\ns_barrier")
                if u == -1:
                    b.add(signal("x", sW0))
            if g == self.G - 1 and tail:
                b(tail[0])
            if u == -2 and g < self.bar:
                continue
            here = list(extra.get(g, []))
            for key in self.pat[g]:
                n = u + key[1]
                if self.valid(key, n, False):
                    here.append(Ins(self.text((key[0], n) + key[2:]), f"{key[2]}{n%4}" if key[0] == "dma" else None))
            here.sort(key=lambda i: ORDER[i.kind])
            assert g != self.G - 1 or not any(i.kind == "salu" for i in here)
            b.add(here)
        if tail:
            b(tail[1])


PASSES = [("g", 4, 0), ("u", 4, 0), ("g", 4, 1), ("u", 4, 1), ("T", 2, 0)]


def wg_dma(cidx):
    p, c = divmod(cidx, 3)
    kind, _, i2 = PASSES[p]
    out = []
    for s in range(2):
        if kind == "T":
            if s == 0:
                out.append(f"s_add_u32 s{sWa}, s{sColT}, {c*192*2*F}")
            out.append(f"s_add_u32 m0, s{sMT2}, {L_WG + (cidx%4)*24576 + s*12288}")
            r, vo = (WG, WU)[s], vDT
        else:
            out.append(f"s_add_u32 s{sWa}, s{sColG}, {(c*192 + s*24)*2*F + i2*128}")
            out.append(f"s_add_u32 m0, s{sMG}, {L_WG + (cidx%4)*24576 + s*3072}")
            r, vo = (WG if kind == "g" else WU), vDG
        out += [f"buffer_load_dwordx4 v{vo+i}, s[{r}:{r+3}], s{sWa} offen offset:{i*1024} lds" for i in range(3)]
    return out


def g_stream():
    out = [(t, "W0") for t in wg_dma(0)]
    for ks in range(18):
        out += [(t, None) for t in x_loads(ks, xg_reg, ks == 0)]
        if ks in (4, 10):
            out += [(t, f"W{ks//6+1}") for t in wg_dma(ks // 6 + 1)]
    return out


def take_vmem(stream, n):
    out = []
    while stream and n > 0:
        out.append(stream.pop(0))
        n -= out[-1][0].startswith("buffer")
    return out


def final_slot(A, b, stream, force_retry):
    keys = [k for k in A.mk if k[0] == "pv"]
    keys = keys[:16] + [k for k in A.mk if k[0] == "sum"] + keys[16:]
    mf = [A.mfma(31, k) for k in keys]
    start = [next(i for i, k in enumerate(keys) if k[0] == "pv" and k[1] == dt) for dt in range(8)]
    P = Plan()
    for g in range(A.G):
        for key in A.pat[g]:
            n = 31 + key[1]
            if not A.valid(key, n, True):
                continue
            t = A.text((key[0], n) + key[2:])
            if key[0] == "vr":
                dt = key[2]
                if dt < 2:
                    b(t)
                else:
                    P.add(t, -1 if dt < 4 else start[dt - 4] + 7, max(start[dt] - 8, 0))
            else:
                P.add(t, -1, 4)
    P.pin(5, [Ins("s_waitcnt vmcnt(0)"), Ins("s_barrier")] + poll_check("x", 32 << 8))
    pos = 9
    for t, tag in take_vmem(stream, 15):
        pos = P.paced([t], pos, 4, tag=tag, space=2, slack=2)
    ls = start[2] + 6
    ts = [f"v_accvgpr_read_b32 v{vLS+qb}, a{aL+qb*4}" for qb in A.sumq]
    rest = [qb for qb in range(4) if qb not in A.sumq]
    for op in ("v_permlane32_swap_b32", "v_permlane16_swap_b32"):
        ts += [f"v_mov_b32 v{vTMP+qb}, v{vLS+qb}" for qb in rest]
        ts += [f"{op} v{vLS+qb}, v{vTMP+qb}" for qb in rest]
        ts += [f"v_add_f32 v{vLS+qb}, v{vLS+qb}, v{vTMP+qb}" for qb in rest]
    ts += [f"v_add_f32 v{vTMP+1}, v{vLS}, v{vLS+1}", f"v_add_f32 v{vTMP+2}, v{vLS+2}, v{vLS+3}",
           f"v_add_f32 v{vTMP+1}, v{vTMP+1}, v{vTMP+2}", f"v_mov_b32 v{vTMP+2}, {f2u(0.0 if force_retry else SAFE_L)}",
           f"v_cmp_nge_f32 vcc, v{vTMP+2}, v{vTMP+1}", f"v_mov_b32 v{vTMP+3}, {L_FLAG}", f"v_mov_b32 v{vTMP+4}, 1"]
    chk = len(mf) - 14
    for t in ts:
        P.add(t, ls, chk - 3)
    for qb in range(4):
        r = hole(qb // 2) + 2 * (qb % 2)
        P.add(f"v_rcp_f32 v{r}, v{vLS+qb}", ls, None)
        P.add(f"v_mov_b32 v{r+1}, v{r}", ls, None)
    P.pin(chk, [Ins("s_cbranch_vccnz att_flag"), Ins("att_flagged:"), Ins("s_barrier"), Ins(f"ds_read_b32 v{vTMP+4}, v{vTMP+3}")])
    P.emit(b, mf)
    b(f"v_readfirstlane_b32 s{sT0}, v{vTMP+4}\ns_cmp_gt_u32 s{sT0}, s{sRetry}\ns_cbranch_scc1 att_retry")


def o_pack(b, stream):
    for n in range(16):
        p, qb = divmod(n, 4)
        b.add([Ins(t, tag) for t, tag in take_vmem(stream, 1 + (n % 4 == 0))])
        t = 80 + (n % 2) * 8
        r = hole(qb // 2) + 2 * (qb % 2)
        for e in range(8):
            b(f"v_accvgpr_read_b32 v{t+e}, a{aO + ((2*p + e//4)*4 + qb)*4 + e%4}")
        for e in range(4):
            b(f"v_pk_mul_f32 v[{t+2*e}:{t+2*e+1}], v[{t+2*e}:{t+2*e+1}], v[{r}:{r+1}]")
        for e in range(4):
            b(f"v_cvt_pk_bf16_f32 v{OPK[n]+e}, v{t+2*e}, v{t+2*e+1}")


def act_store(reg, qb, sdst):
    return f"buffer_store_dwordx4 {r4('v', reg)}, v{vXA + qb//2}, s[{WS}:{WS+3}], s{sdst} offen offset:{(qb&1)*1024} sc1"


def sigmoid(regs):
    out = []
    for op in (f"v_mul_f32 v{{0}}, s{sC}, v{{0}}", "v_exp_f32 v{0}, v{0}", "v_add_f32 v{0}, 1.0, v{0}", "v_rcp_f32 v{0}, v{0}"):
        out += [op.format(r) for r in regs]
    return out


def p3_vregs():
    t = 54
    out = [f"v_add_u32 v{vA3}, s{sBq}, v{vL16}", f"v_xor_b32 v{vA3+1}, 1024, v{vA3}"]
    for m in range(1, 4):
        out += [f"v_add_u32 v{vA3+2*m+i}, {4096*m}, v{vA3+i}" for i in range(2)]
    out.append(f"v_mov_b32 v{t}, s{sPar}")
    for i in range(9):
        out.append(f"v_mul_i32_i24 v{t+1}, {(8-2*i)*1024}, v{t}")
        out.append(f"v_add_u32 v{t+1}, {4096 + (i - i%4)*1024}, v{t+1}")
        out.append(f"v_add_u32 v{vW3+i}, v{t+1}, v{vL16}")
    for i in range(3):
        out.append(f"v_add_u32 v{vB3+i}, {L_P3[i]}, v{vL16}")
    out += [f"v_lshrrev_b32 v{vL8}, 1, v{vL16}",
            f"v_and_b32 v{t+2}, 15, v0", f"v_mul_u32_u24 v{t+2}, {2*D}, v{t+2}",
            f"v_bfe_u32 v{t+3}, v0, 4, 2", f"v_lshl_add_u32 v{t+2}, v{t+3}, 3, v{t+2}"]
    for i in range(5):
        k = (8 - 2 * i) * 32 if i < 4 else 0x400000
        out.append(f"v_mul_u32_u24 v{t+3}, {k}, v{t}")
        out.append(f"v_add_u32 v{t+3}, {32*i}, v{t+3}")
        out.append(f"v_add_u32 v{vO3+i}, v{t+3}, v{t+2}")
    return out


def p3_loads(s):
    out = [f"s_mov_b32 s{sWc}, s{sWs if s == 0 else sWy}" if s in (0, NS1) else f"s_add_u32 s{sWc}, s{sWc}, {4*36864}"]
    for i in range(9):
        if i % 4 == 0:
            out.append(f"s_add_u32 m0, s{sM3}, {L_P3[s%3] + i*1024}")
        out.append(f"buffer_load_dwordx4 v{vW3+i}, s[{WS}:{WS+3}], s{sWc} offen offset:{i%4*1024} sc1 lds")
    out.append(f"s_mov_b32 s{sA}, s{sAs if s == 0 else sAy}" if s in (0, NS1) else f"s_add_u32 s{sA}, s{sA}, 16384")
    for q in range(2):
        for m in range(4):
            out.append(f"buffer_load_dwordx4 {p3x(s, q*4+m)}, v{vA3+2*m+q}, s[{WS}:{WS+3}], s{sA} offen sc1")
    return out


def poll_load(r, flag):
    return f"buffer_load_dword v{vF}, off, s[{r}:{r+3}], {flag if isinstance(flag, str) else 's%d' % flag} sc1"


def poll_test(need, mask):
    return [f"v_readfirstlane_b32 s{sT0}, v{vF}"] + ([f"s_and_b32 s{sT0}, s{sT0}, {mask:#x}"] if mask else []) + \
           [f"s_cmp_ge_u32 s{sT0}, {need}"]


def poll_check(name, need, mask=None):
    return [Ins(t) for t in poll_test(need, mask) + [f"s_cbranch_scc0 spin_{name}", f"back_{name}:"]]


def spin_block(b, name, r, flag, need, mask=None):
    b(f"spin_{name}:\ns_mov_b32 s{sSpin}, {SPIN_MAX}\nspin_{name}_loop:\n{poll_load(r, flag)}\ns_waitcnt vmcnt(0)")
    b.add(poll_test(need, mask))
    b(f"""s_cbranch_scc1 back_{name}
    s_sleep 1
    s_sub_u32 s{sSpin}, s{sSpin}, 1
    s_cmp_lg_u32 s{sSpin}, 0
    s_cbranch_scc1 spin_{name}_loop
    s_branch back_{name}""")


def signal(name, who=None):
    return [Ins(f"s_cmp_eq_u32 s{who or sW}, 0"), Ins(f"s_cbranch_scc1 sig_{name}"), Ins(f"sigd_{name}:")]


def signal_block(b, name, r, flag, inc=1):
    b(f"""sig_{name}:
    v_mov_b32 v{vONE}, {inc}
    s_mov_b64 exec, 1
    buffer_atomic_add v{vONE}, off, s[{r}:{r+3}], {flag if isinstance(flag, str) else 's%d' % flag} sc1
    s_mov_b64 exec, -1
    s_nop 3
    s_branch sigd_{name}""")


MSG = {1: [(0, 8 - k) for k in range(5)], 2: [(1, k) for k in range(5)], 3: [(1, 8 - k) for k in range(5)]}


def xfer(op, reg, piece, soff):
    if piece < 2:
        return f"buffer_{op}_dwordx4 {r4('v', reg + piece*4)}, v{vL16}, s[{WS}:{WS+3}], s{soff} offen offset:{piece*1024} sc1"
    return f"buffer_{op}_dwordx2 v[{reg+8}:{reg+9}], v{vL8}, s[{WS}:{WS+3}], s{soff} offen offset:2048 sc1"


def recv(base):
    out = []
    for d in range(3):
        out += [xfer("load", base + d * 12, i, sRecv) for i in range(3)]
        out.append(f"s_add_u32 s{sRecv}, s{sRecv}, {12288 if d < 2 else XB_GEMM - 2*12288}")
    return out


def add_partials(b, acc, rx, tmp):
    for d in range(3):
        for k in range(10):
            t = tmp + (k % 4) * 2
            b(f"""v_lshlrev_b32 v{t}, 16, v{rx+d*12+k}
            v_and_b32 v{t+1}, 0xffff0000, v{rx+d*12+k}
            v_pk_add_f32 v[{acc+2*k}:{acc+2*k+1}], v[{acc+2*k}:{acc+2*k+1}], v[{t}:{t+1}]""")


def phase_g3(head, b, tail, stream, stamps):
    mf, groups = [], []
    for p, (kind, nqb, _) in enumerate(PASSES):
        for c in range(3):
            for kg in range(2):
                for t in range(4):
                    gi = len(groups)
                    groups.append(dict(p=p, c=c, kg=kg, t=t, start=len(mf), kind=kind))
                    for qb in range(nqb):
                        d = r4("v", ACC[p % 2] + qb * 16 + t * 4)
                        for k in range(3):
                            ks = c * 6 + kg * 3 + k
                            mf.append(f"{MF} {d}, {r4('v', af(gi, k))}, {xg_reg(ks, qb)}, {'0' if ks == 0 else d}")
    Z = len(mf)
    pstart = [next(g["start"] for g in groups if g["p"] == p) for p in range(5)] + [Z]
    G3 = []
    for s in range(NST):
        G3 += [(s, t) for t in ([8, 7, 6, 5, 4, 0, 1, 2, 3] if s in (NS1 - 1, NST - 1) else range(9))]
    done = {}
    for G, (s, t) in enumerate(G3):
        acc = ACS if s < NS1 else ACY
        for q in range(2):
            d = r4("v", acc + (q * 9 + t) * 4)
            for m in range(4):
                mf.append(f"{MF} {d}, {p3w(G, m)}, {p3x(s, q*4+m)}, {'0' if s in (0, NS1) and m == 0 else d}")
            done[(s, q, t)] = len(mf) - 1
    N = len(mf)

    def reads(gi):
        g = groups[gi]
        slot = (g["p"] * 3 + g["c"]) % 4
        out = []
        for k in range(3):
            for h in range(2):
                kh = (g["kg"] * 3 + k) * 2 + h
                if g["kind"] == "T":
                    off, va = (g["t"] // 2) * 12288 + kh * 1024, vTT + 2 * (slot // 2) + g["t"] % 2
                else:
                    off, va = kh * 2048, vTG + 4 * (slot // 2) + g["t"]
                out.append(f"ds_read_b64_tr_b16 v[{af(gi,k)+2*h}:{af(gi,k)+2*h+1}], v{va} offset:{L_WG + off + 24576*(slot%2)}")
        return out

    def reads3(G):
        s, t = G3[G]
        return [f"ds_read_b128 {p3w(G, m)}, v{vB3 + s%3} offset:{m*9216 + t*1024}" for m in range(4)]
    head(f"s_mov_b32 s{sC}, {f2u(-LOG2E)}\nWAITVM W0\ns_barrier")
    head.add(reads(0))
    P = Plan()
    bar = {g: groups[g * 8 + 7]["start"] - 1 for g in range(15)}
    for c in range(15):
        tags = f"W{c+1}" if c < 14 else ""
        tags += " OS" if c == TUNE["gsig"] else ""
        tags += " P0" if c == 13 else ""
        if c < 14:
            P.barrier(bar[c], tags)
    for gi, g in enumerate(groups[:-1]):
        st, nx = g["start"], groups[gi + 1]["start"]
        for k, t in enumerate(reads(gi + 1)):
            rdy = st - 1 + (k if nx - st == 12 else k // 2)
            P.add(t, rdy, rdy + 2)
    pos = 1
    for t, tag in stream:
        pos = P.paced([t], pos, 3.5, tag=tag)
    xend = pos
    for tgt in range(3, 15):
        cidx = tgt - 4
        small = PASSES[tgt // 3][0] == "T"
        start = max(bar[cidx] + 4 if cidx >= 0 else 0, pos)
        step = 6 if tgt < 6 else (11 if small else 8)
        pos = P.paced(wg_dma(tgt), start, step, tag=f"W{tgt}", space=4)
    wend = pos
    ts = []
    for n in range(16):
        ts += ([f"s_add_u32 s{sT1}, s{sO}, {n//4*4096}"] if n % 4 == 0 else []) + [act_store(OPK[n], n % 4, sT1)]
    o0 = max(TUNE["ost0"], xend)
    P.paced(ts[:10], o0 + 3, (pstart[1] + 16 - o0) / 8, "OS")
    P.paced(ts[10:], pstart[1] + 30, (TUNE["ost1"] - pstart[1] - 30) / 8, "OS")
    P.pin(bar[TUNE["gsig"]] + 1, signal("g"))
    for g in (150, 520, 900, Z + 70, Z + 430):
        P.paced(code_prefetch(0x2000), g, 1)
    P.paced(code_prefetch(TUNE.get("laststep", 0x800)), Z + 790, 1)
    P.spread(p3_vregs(), pstart[2] + 60, pstart[3] - 40)
    for p in range(5):
        kind, nqb, i2 = PASSES[p]
        st = pstart[p + 1]
        en = pstart[p + 2] if p < 4 else None
        acc = ACC[p % 2]
        if kind == "g":
            lo, hi = st - 30, en - 6
            for t in range(4):
                for q2 in range(2):
                    ts = sigmoid([acc + qb * 16 + t * 4 + e for qb in (2 * q2, 2 * q2 + 1) for e in range(4)])
                    for k, x in enumerate(ts):
                        P.add(x, st - 48 + t * 12 + q2 * 6 + 10, None, prio=lo + 16 + ((t * 2 + q2) * 32 + k) * (hi - lo - 16) // 256)
        elif kind == "u":
            for t in range(4):
                for qb in range(4):
                    dn = st - 48 + t * 12 + qb * 3 + 2
                    for e in range(4):
                        r = qb * 16 + t * 4 + e
                        P.add(f"v_mul_f32 v{acc+r}, v{ACC[0]+r}, v{acc+r}", dn + 5, en - 60)
            ts = [f"s_add_u32 s{sH}, s{sHb}, {i2*8192}", f"s_add_u32 s{sH2}, s{sHb}, {i2*8192+4096}"]
            dst = [acc + qb * 16 for qb in range(4)] if i2 == 0 else [ACC[0] + 32 + qb * 8 for qb in range(4)]
            for qb in range(4):
                ts += [f"v_cvt_pk_bf16_f32 v{dst[qb]+e}, v{acc+qb*16+2*e}, v{acc+qb*16+2*e+1}" for e in range(8)]
            P.spread(ts, st + 6, en - 8 if i2 else st + 120)
            first, last = (st + 50, en - 6) if i2 == 0 else (st + 60, Z + 60)
            for k in range(8):
                g = first + k * (last - first) // 8
                P.add(act_store(dst[k // 2] + 4 * (k % 2), k // 2, (sH, sH2)[k % 2]), g, g + 30, prio=g, tag="HS", space=3)
        else:
            ts = []
            for qb in range(2):
                base = acc + qb * 16
                ts += sigmoid(range(base, base + 8))
                ts += [f"v_mul_f32 v{base+e}, v{base+e}, v{base+8+e}" for e in range(8)]
                ts += [f"v_cvt_pk_bf16_f32 v{base+e}, v{base+2*e}, v{base+2*e+1}" for e in range(4)]
            P.spread(ts, st + 4, st + 110)
            for qb in range(2):
                P.add(act_store(acc + qb * 16, qb, sHt), st + 60, st + 130, tag="HS", space=3)
    gchk = max(int(wend) + 2, pstart[3] + 100)
    P.paced([poll_load(DB, "16")], gchk - 70, 1)
    P.pin(gchk, poll_check("g", 256))
    pos = P.paced(p3_loads(0), gchk + 4, 6, "P0", True)
    P.paced(p3_loads(1), max(pos, bar[11] + 4), 6, "P1", True)
    b3 = {s: Z + s * 72 + 57 for s in range(NST - 1)}
    for s in b3:
        P.barrier(b3[s], f"P{s+1}" + {TUNE["hsig"]: " HS", TUNE["ssig"]: " SS"}.get(s, ""))
    P.pin(b3[TUNE["hsig"]] + 1, signal("h"))
    P.pin(b3[TUNE["ssig"]] + 1, signal("s"))
    for G in range(-2, len(G3) - 2):
        st = Z + G * 8 - 1 if G % 9 != 7 or G < 0 else b3[G // 9]
        for k, t in enumerate(reads3(G + 2)):
            P.add(t, st + k // 2, st + 3 + k // 2)
    for s in range(NST - 2):
        P.paced(p3_loads(s + 2), Z + s * 72 + 1, 4, f"P{s+2}", True, space=2, slack=3)
    P.paced([poll_load(WS, sFHc)], Z + (NS1 - 3) * 72 + 34, 1, space=2)
    P.pin(Z + (NS1 - 2) * 72 + 33, poll_check("h", 32))
    P.paced([poll_load(WS, sFS)], Z + 14 * 72 + 34, 1, space=2)
    P.pin(Z + 15 * 72 + 30, poll_check("s", 4))
    srdb = Block()
    srd(srdb, SO, sOp, S * D * 2)
    for k, i in enumerate(srdb.ins):
        P.add(i.text, Z + 100 + 2 * k, Z + 200)
    P.paced([f"buffer_load_dwordx2 v[{vXI+2*i}:{vXI+2*i+1}], v{vO3+i}, s[{SX}:{SX+3}], s{sOut} offen" for i in range(5)],
            Z + 15 * 72 + 2, 5, space=2)
    for s, acc, tag in ((NS1 - 1, ACS, "SS"), (NST - 1, ACY, "YS")):
        mid = s == NS1 - 1
        for j, d in enumerate((1, 3, 2)):
            for k, (q, t) in enumerate(MSG[d]):
                r = acc + (q * 9 + t) * 4
                for h in range(2):
                    P.add(f"v_cvt_pk_bf16_f32 v{vSEND+(d-1)*12+2*k+h}, v{r+2*h}, v{r+2*h+1}", done[(s, q, t)] + 5, None,
                          prio=done[(s, q, t)] + 8)
            for i in range(3):
                lo = Z + s * 72 + (43 + (j * 3 + i) * ((TUNE["ssig"] - s) * 72 - 50) // 9 if mid else 0)
                P.add(xfer("store", vSEND + (d - 1) * 12, i, sSend + d - 1), lo, lo + 8 if mid else None, tag=tag,
                      prio=Z + s * 72, space=2)
            if mid:
                P.add(f"s_add_u32 s{sSend+d-1}, s{sSend+d-1}, {XB_GEMM}", Z, Z + 14 * 72)
        if mid:
            P.paced(recv(ACS + 20), Z + 15 * 72 + 32, 4, space=2)
    st = []
    if stamps:
        st = [(pstart[p] - 1, 7 + p) for p in range(1, 6)]
        st += [(Z + s * 72 - 1, n) for n, s in ((13, 1), (18, 2), (19, 6), (20, 8), (21, 12), (22, 15))]
    P.emit(b, mf, st)
    if stamps: stamp(tail, 14)
    U = ACS + 56
    add_partials(tail, ACS, ACS + 20, U)
    tail("s_waitcnt vmcnt(0)\ns_barrier")
    tail.add(signal("y"))
    X2 = ACS + 20
    for i in range(10):
        tail(f"v_lshlrev_b32 v{X2+2*i}, 16, v{vXI+i}\nv_and_b32 v{X2+2*i+1}, 0xffff0000, v{vXI+i}")
    tail(poll_load(WS, sFY))
    if stamps: stamp(tail, 15)
    tail.add(poll_check("y", 4))
    if stamps: stamp(tail, 16)
    tail.add(recv(ACY + 20))
    add_partials(tail, ACY, ACY + 20, U)
    G2 = ACY + 20
    for r in range(0, 20, 2):
        tail(f"v_pk_mul_f32 v[{ACS+r}:{ACS+r+1}], v[{ACS+r}:{ACS+r+1}], v[{ACY+r}:{ACY+r+1}]")
    for op in (f"v_mul_f32 v{{0}}, s{sC}, v{{1}}", "v_exp_f32 v{0}, v{0}", "v_add_f32 v{0}, 1.0, v{0}", "v_rcp_f32 v{0}, v{0}"):
        for r in range(20):
            tail(op.format(G2 + r, ACY + r))
    for i in range(5):
        for e in (0, 2):
            r = 4 * i + e
            tail(f"v_pk_fma_f32 v[{X2+r}:{X2+r+1}], v[{ACS+r}:{ACS+r+1}], v[{G2+r}:{G2+r+1}], v[{X2+r}:{X2+r+1}]")
        for e in (0, 2):
            r = 4 * i + e
            tail(f"v_cvt_pk_bf16_f32 v{vXI+r//2}, v{X2+r}, v{X2+r+1}")
        tail(f"buffer_store_dwordx2 v[{vXI+2*i}:{vXI+2*i+1}], v{vO3+i}, s[{SO}:{SO+3}], s{sOut} offen")
    if stamps:
        tail("s_waitcnt vmcnt(0)")
        stamp(tail, 17)
        stamp_flush(tail)
    tail("s_endpgm")


def gen_main(sumq=(0, 1, 2, 3), lag=7, barback=16, verbose=False, force_retry=False, stamps=False):
    A = Attn(sumq, lag, barback)
    names = ("pro", "side0", "pq", "fmax", "apro", "loopabc", "loopd", "side", "final", "pack", "pg", "tail", "retry", "retryloop", "retry2", "end")
    blocks = [Block(n) for n in names]
    pro, side0, pq, fm, ap, lp, lp2, side, fin, pk, pg, tail, rt, rl, rt2, end = blocks
    setup(pro)
    if stamps: stamp(pro, 0)
    phase_q(pro, pq, stamps)
    if stamps: stamp(pq, 3)
    first_max(fm)
    ap("att_restart:")
    finish_max(ap)
    for qb in range(4):
        if qb not in sumq:
            ap(f"v_mov_b32 v{vLS+qb}, 0")
    ap(f"s_mov_b32 s{sCnt}, 7")
    A.slot(ap, -2)
    A.slot(ap, -1)
    if stamps: stamp(ap, 4)
    lp(".p2align 6\natt_loop:")
    A.slot(lp, 0)
    A.slot(lp, 1)
    A.slot(lp, 2, (f"s_cmp_eq_u32 s{sCnt}, 0", "s_cbranch_scc1 att_final"))
    A.slot(lp2, 3, (f"s_sub_u32 s{sCnt}, s{sCnt}, 1", "s_branch att_loop"))
    side(f"att_side:\natt_flag:\nds_write_b32 v{vTMP+3}, v{vTMP+4}\ns_waitcnt lgkmcnt(0)\ns_branch att_flagged")
    for args in (("x", DB, sFL, 32 << 8), ("g", DB, "16", 256), ("h", WS, sFHc, 32), ("s", WS, sFS, 4), ("y", WS, sFY, 4)):
        spin_block(side, *args)
    for args in (("g", DB, "16"), ("h", WS, sFHp), ("s", WS, sFS), ("y", WS, sFY)):
        signal_block(side, *args)
    side0("s_branch att_go")
    spin_block(side0, "l", DB, sFL, 32, 0xff)
    signal_block(side0, "l", DB, sFL)
    signal_block(side0, "x", DB, sFL, 256)
    side0("att_go:")
    fin("att_final:")
    if stamps: stamp(fin, 5)
    stream = g_stream()
    final_slot(A, fin, stream, force_retry)
    if stamps: stamp(pk, 6)
    o_pack(pk, stream)
    assert sum("a[" in t or "v[" in t for t, _ in stream if t.startswith("buffer") and " lds" not in t) >= 72 - 26
    if stamps: stamp(pk, 7)
    phase_g3(pk, pg, tail, stream, stamps)
    rt(f"att_retry:\ns_mov_b32 s{sRetry}, 1\ns_mov_b32 s{sW0}, 1\ns_mov_b32 s{sKo}, 0\ns_mov_b32 s{sCnt}, 32\ns_waitcnt vmcnt(0)")
    for qb in range(4):
        rt(f"v_mov_b32 v{vTMP+qb}, 0xff800000")
    rl("att_maxloop:\ns_barrier")
    rl.add(kv_dma("K", 0))
    rl("s_waitcnt vmcnt(0)\ns_barrier")
    for kb in range(4):
        for kk in range(4):
            rl(k_read(0, kb, kk))
        for qb in range(4):
            d = r4("v", sreg(0, qb))
            for kk in range(4):
                rl(f"{MF} {d}, {r4('a', aK + (kb%2)*16 + kk*4)}, {r4('v', qreg(qb, kk))}, {'0' if kk == 0 else d}")
        for qb in range(4):
            s = sreg(0, qb)
            rl(f"v_max3_f32 v{vTMP+qb}, v{vTMP+qb}, v{s}, v{s+1}\nv_max3_f32 v{vTMP+qb}, v{vTMP+qb}, v{s+2}, v{s+3}")
    rl(f"s_sub_u32 s{sCnt}, s{sCnt}, 1\ns_cmp_lg_u32 s{sCnt}, 0\ns_cbranch_scc1 att_maxloop")
    rt2(f"s_barrier\ns_mov_b32 s{sKo}, 0\ns_mov_b32 s{sVo}, 0")
    for which, slot in (("K", 0), ("V", 0), ("K", 1)):
        rt2.add([Ins(t, f"{which}{slot}") for t in kv_dma(which, slot)])
    for r in range(144):
        rt2(f"v_accvgpr_write_b32 a{r}, 0")
    rt2("s_waitcnt vmcnt(0)\ns_barrier")
    for kk in range(4):
        rt2(k_read(0, 0, kk))
    rt2("s_waitcnt lgkmcnt(0)\ns_branch att_restart")
    end("att_end:\ns_endpgm")
    main = [pro, pq, fm, ap, lp, lp2, lp, lp2, lp, fin]
    traces = [main + [pk, pg, tail], main + [rt, rl, rl, rt2, ap, lp, lp2, lp, fin, pk]]
    insert_waits(traces)
    n = pad_hazards(traces + [[side], [side0]], verbose)
    if verbose:
        print("pads", n)
        for blk in (pro, pq, fm, ap, lp, lp2, fin, pk, pg, tail):
            c, nm, over = estimate(blk)
            print(blk.name, "est cycles", c, "mfma", nm, "ideal", nm * 16, "ninstr", len(blk.ins), "over", len(over), sum(o[1] for o in over))
            if blk is pg: print([o[0] for o in over])
    return dict(name=KNAME, grid=256, block=256, lds=LDS_BYTES, vgpr=512, acc=256, sgpr=102,
                text="".join(x.text() for x in blocks),
                spans=[(KNAME, 3, 3 * 8192), ("att_side", 7, 6 * 8192 + TUNE.get("laststep", 0x800))])


if __name__ == "__main__":
    from build import assemble
    print(assemble([gen_main(verbose=True)], "g.s"))
    assemble([gen_main(stamps=True)], "g_st.s")
    assemble([gen_main(force_retry=True)], "g_rt.s")
```

```python
from isa import Ins


class Item:
    def __init__(self, text, ready, deadline=None, tag=None, key=None, prio=None, space=5):
        self.ins = Ins(text, tag)
        self.ready = ready
        self.deadline = deadline if deadline is not None else 1 << 30
        self.prio = prio if prio is not None else self.deadline
        self.key = key
        self.space = space
        self.gap = None
        self.preds = []


def cost(i):
    if i.kind in ("trans", "vmem"):
        return 8
    return 4


ORDER = {"pseudo": 0, "wait": 0, "barrier": 1, "salu": 2, "branch": 2, "nop": 2, "ds": 3, "vmem": 3, "valu": 4, "trans": 4}


def schedule(ngaps, items, pinned=None, cap=8, keep_head=(), mfmas=None):
    pinned = pinned or {}
    lastw, readers = {}, {}
    for n, it in enumerate(items):
        it.seq = n
        ps = set()
        for r in it.ins.rd:
            if r in lastw: ps.add(lastw[r])
        for r in it.ins.wr:
            if r in lastw: ps.add(lastw[r])
            ps.update(readers.get(r, ()))
        ps.discard(it)
        it.preds = list(ps) + it.preds
        for r in it.ins.rd:
            readers.setdefault(r, []).append(it)
        for r in it.ins.wr:
            lastw[r] = it
            readers[r] = []
    if mfmas is not None:
        import bisect
        rd_at, wr_at = {}, {}
        for g, m in enumerate(mfmas):
            m = Ins(m)
            for r in m.rd: rd_at.setdefault(r, []).append(g)
            for r in m.wr: wr_at.setdefault(r, []).append(g)
        for it in items:
            it.anchor = max([it.ready] + [p.anchor for p in it.preds])
            hard = 1 << 30
            for regs, table in ((it.ins.wr, rd_at), (it.ins.wr | it.ins.rd, wr_at)):
                for r in regs:
                    l = table.get(r, ())
                    k = bisect.bisect_right(l, it.anchor)
                    if k < len(l): hard = min(hard, l[k] - 1)
            it.hard = hard
            it.deadline = min(it.deadline, max(hard - 1, it.anchor))
            it.prio = min(it.prio, it.deadline)
    for it in reversed(items):
        for p in it.preds:
            p.deadline = min(p.deadline, it.deadline - 1)
            p.prio = min(p.prio, it.prio - 1)
    out = [[] for _ in range(ngaps + 1)]
    todo = sorted(items, key=lambda t: (t.prio, t.seq))
    vfree = 0
    for g in range(ngaps):
        left = cap
        head = g not in keep_head
        for p in pinned.get(g, ()):
            if p.kind == "pseudo":
                continue
            if head and p.kind in ("wait", "barrier", "salu", "branch"):
                head = False
            else:
                left -= cost(p)
        placed = []
        for it in todo:
            if it.ready > g or any(p.gap is None or p.gap >= g for p in it.preds):
                continue
            i = it.ins
            force = it.deadline <= g
            if i.kind == "salu":
                if any(x.ins.kind == "vmem" for x in placed) and not force:
                    continue
                if head:
                    head = False
                elif force:
                    left -= 4
                else:
                    continue
            else:
                c = cost(i)
                if i.kind == "vmem" and not force and (any(x.ins.kind == "salu" for x in placed) or g in keep_head):
                    continue
                if c > left and not force:
                    continue
                if i.kind == "vmem":
                    if g < vfree and not force:
                        continue
                    vfree = g + it.space
                left -= c
            it.gap = g
            placed.append(it)
        if placed:
            todo = [t for t in todo if t.gap is None]
        placed.sort(key=lambda t: (ORDER[t.ins.kind], t.seq))
        out[g] = list(pinned.get(g, ())) + placed
    todo.sort(key=lambda t: t.seq)
    if mfmas is not None:
        for it in items:
            g = ngaps if it.gap is None else it.gap
            assert g <= it.hard, f"filler crossed a dependent MFMA: {it.ins.text} ready {it.ready} anchor {it.anchor} gap {g} hard {it.hard}"
    out[ngaps] = list(pinned.get(ngaps, ())) + todo
    return out


def weave(block, mfmas, gaps):
    for g, m in enumerate(mfmas):
        block.add(m)
        for it in gaps[g]:
            block.add(it.ins if isinstance(it, Item) else it)
    for it in gaps[len(mfmas)]:
        block.add(it.ins if isinstance(it, Item) else it)
```
